```python
import torch

def _softmax(x, axis=-1):
    return torch.softmax(x, dim=axis)

def _gelu(x):
    return torch.nn.functional.gelu(x, approximate='tanh')

def _silu(x):
    return torch.nn.functional.silu(x)

def _sigmoid(x):
    return torch.sigmoid(x)

def _layernorm(x, axis=-1, eps=1e-05):
    m = x.mean(dim=axis, keepdim=True)
    v = x.var(dim=axis, keepdim=True, unbiased=False)
    return (x - m) / torch.sqrt(v + eps)

def _scatter_add(tgt, idx, src, axis=0):
    return tgt.clone().index_add_(axis, idx, src)

def _segment_sum(src, seg, n):
    out = torch.zeros((n,) + src.shape[1:], dtype=src.dtype)
    return out.index_add_(0, seg, src)

def _pad(x, pw):
    flat = tuple((v for pair in reversed(pw) for v in pair))
    return torch.nn.functional.pad(x, flat)
kernel_name = 'standalone__tree_speculative_verify_tree_attention_over_candidate_token_tree__sampling'

def setup_inputs():

    _w = lambda a: (lambda t: t.to(torch.bfloat16) if t.is_floating_point() else t)(torch.as_tensor(a))
    B, Hq, Hkv, T, C, D = (8, 16, 8, 16, 8192, 256)
    tree_mask = torch.zeros((B, T, T), dtype=float)
    for b in range(B):
        parent = torch.zeros(T, dtype=torch.int64)
        for i in range(1, T):
            parent[i] = int(torch.randint(0, i, (1,)).item())
        for i in range(T):
            j = i
            tree_mask[b, i, j] = 1.0
            while j > 0:
                j = parent[j]
                tree_mask[b, i, j] = 1.0
    return {'q': _w((lambda *s: torch.randn(*s, dtype=torch.bfloat16) * 0.8)(B, Hq, T, D)), 'k_cache': _w((lambda *s: torch.randn(*s, dtype=torch.bfloat16) * 0.8)(B, Hkv, C, D)), 'v_cache': _w((lambda *s: torch.randn(*s, dtype=torch.bfloat16) * 0.05)(B, Hkv, C, D)), 'k_tree': _w((lambda *s: torch.randn(*s, dtype=torch.bfloat16) * 0.8)(B, Hkv, T, D)), 'v_tree': _w((lambda *s: torch.randn(*s, dtype=torch.bfloat16) * 0.05)(B, Hkv, T, D)), 'tree_mask': _w(tree_mask)}

def reference(q, k_cache, v_cache, k_tree, v_tree, tree_mask):
    B, Hq, T, D = q.shape
    Hkv, C = (k_cache.shape[1], k_cache.shape[2])
    rep = Hq // Hkv
    kc = (lambda x, n, axis: torch.repeat_interleave(x, n, dim=axis))(k_cache, rep, axis=1)
    vc = (lambda x, n, axis: torch.repeat_interleave(x, n, dim=axis))(v_cache, rep, axis=1)
    kt = (lambda x, n, axis: torch.repeat_interleave(x, n, dim=axis))(k_tree, rep, axis=1)
    vt = (lambda x, n, axis: torch.repeat_interleave(x, n, dim=axis))(v_tree, rep, axis=1)
    k = torch.concatenate([kc, kt], axis=2)
    v = torch.concatenate([vc, vt], axis=2)
    scale = D ** (-0.5)
    scores = torch.einsum('bhqd,bhkd->bhqk', q, k) * scale
    ctx_mask = torch.ones((B, 1, T, C), dtype=scores.dtype)
    tm = tree_mask[:, None, :, :].clone()
    full_mask = torch.concatenate([ctx_mask, tm], axis=-1)
    scores = scores + (1.0 - full_mask) * -1000000000.0
    p = _softmax(scores, axis=-1)
    return torch.einsum('bhqk,bhkd->bhqd', p, v)
```

```python
import struct, sys

KN = "standalone__tree_speculative_verify_tree_attention_over_candidate_token_tree__sampling_kernel"
HDR = open("standalone__tree_speculative_verify_tree_attention_over_candidate_token_tree__sampling.s.ref").read().split("; Override")[0]

def f32(x):
    return "0x%08x" % struct.unpack("<I", struct.pack("<f", x))[0]

C_SCALE = 1.4426950408889634 / 16.0
MASK_K = 1.6e10

V_LANE, V_KSRC, V_VSRC, V_KRD, V_T0, V_T1 = 0, 1, 2, 3, 4, 5
V_MC, V_L = 6, 7
V_A, V_B = 8, 9
V_AL = 10
V_X0, V_X1 = 12, 13
V_CLM = 14
V_TK = 15
V_S = 16
V_P = 32
V_VT = 40
V_AD = 56
V_Z = 60
V_FLG = 61
V_PCO = 62
V_V = 64
V_O = 128
A_Q = 0
A_K = 64
A_P = 128

S_W = 3
S_KSRD, S_VSRD = 8, 12
S_TSRD = 36
S_C = 40
S_PL, S_PH = 41, 42
S_LDSB = 43
S_BO = 44
S_BI = 48
S_G, S_S = 52, 53
S_CNT = 54
S_CUR = 55
S_T0, S_T1, S_T2 = 56, 57, 58
S_TREE = 59
S_KB, S_VB = 60, 62
S_ST0 = 64
S_DSRD = 72
S_CSRD = 76
S_T3 = 80
S_ST = 81
S_P = 82
S_T4 = 83
S_EX = 84
S_PRIV = 86
S_RDY = 87
WS_CNT = 0x1000000
WS_STAT = 0x800000
QBASE = 0x20400 + 0x400 - 0x400 + 1024 - 1024
QBASE = 0x20400
LDS_STAT = 0x20000

def vr(r, n=1):
    return f"v{r}" if n == 1 else f"v[{r}:{r+n-1}]"
def ar(r, n=1):
    return f"a{r}" if n == 1 else f"a[{r}:{r+n-1}]"

def gen(W=8, W2=12, N0=13, npriv=4, stamps=False, flags="nt", wgmap="adj", n2=0, noepi=False, pubflags="sc1", drop=(), cslot=0, st_start=False, pub16=True, probe=False, warm=False, linein=False, dbgtime=False, WV=None, WL=8, nl=0, bias=()):
    WV = W if WV is None else WV
    L = []
    A = L.append
    LDS = 128 * 1024 + 1024 + 16384 + 4096
    TBASE = QBASE + 16384
    PB = 16 * (16 - N0) * 4 - 4 * npriv
    n4 = (PB - 2 * n2) // 4
    assert n4 * 4 + 2 * n2 == PB
    NI = n4 + n2
    A(HDR.rstrip("\n"))
    A(f"; @launch grid=(256,1,1) block=(256,1,1) lds={LDS}")
    A('.amdgcn_target "amdgcn-amd-amdhsa--gfx950"')
    A(".text")
    A(f".globl {KN}")
    A(".p2align 8")
    A(f".type {KN},@function")
    A(f"{KN}:")
    A("  s_cmp_ge_u32 s2, 256")
    A("  s_cbranch_scc1 L_done")
    if stamps or dbgtime:
        A(f"  s_memrealtime s[{S_ST0}:{S_ST0+1}]")
    A("  s_load_dwordx16 s[16:31], s[0:1], 0")
    A("  s_load_dwordx2 s[32:33], s[0:1], 64")
    A(f"  v_lshrrev_b32 v{V_T0}, 6, v0")
    A(f"  v_and_b32 v{V_LANE}, 63, v0")
    A(f"  v_readfirstlane_b32 s{S_W}, v{V_T0}")
    if wgmap == "adj":
        A(f"  s_lshr_b32 s{S_G}, s2, 2")
        A(f"  s_and_b32 s{S_S}, s2, 3")
    elif wgmap == "rot":
        A(f"  s_lshr_b32 s{S_G}, s2, 2")
        A(f"  s_lshr_b32 s{S_S}, s2, 3")
        A(f"  s_add_u32 s{S_S}, s{S_S}, s2")
        A(f"  s_and_b32 s{S_S}, s{S_S}, 3")
    A(f"  v_lshrrev_b32 v{V_T0}, 5, v{V_LANE}")
    A(f"  v_and_b32 v{V_T1}, 31, v{V_LANE}")
    A(f"  v_lshlrev_b32 v{V_VSRC}, 4, v{V_LANE}")
    A(f"  v_lshlrev_b32 v{V_X0}, 6, v{V_T0}")
    A(f"  v_xor_b32 v{V_KSRC}, v{V_VSRC}, v{V_X0}")
    A(f"  v_lshlrev_b32 v{V_X1}, 4, v{V_T0}")
    A(f"  v_xor_b32 v{V_X1}, v{V_X1}, v{V_VSRC}")
    A(f"  s_and_b32 s{S_T2}, s{S_W}, 1")
    A(f"  s_lshl_b32 s{S_T2}, s{S_T2}, 7")
    A(f"  v_xor_b32 v{V_X1}, s{S_T2}, v{V_X1}")
    A(f"  s_lshl_b32 s{S_LDSB}, s{S_W}, 15")
    A(f"  s_lshl_b32 s{S_CUR}, s{S_S}, 20")
    A(f"  s_lshl_b32 s{S_T1}, s{S_W}, 12")
    A(f"  s_add_u32 s{S_CUR}, s{S_CUR}, s{S_T1}")
    A(f"  s_mov_b32 s{S_KSRD+3}, 0x20000")
    A(f"  s_mov_b32 s{S_VSRD+3}, 0x20000")
    A(f"  s_mov_b32 s{S_TSRD+3}, 0x20000")
    A(f"  s_mov_b32 s{S_KSRD+2}, 0x400000")
    A(f"  s_mov_b32 s{S_VSRD+2}, 0x400000")
    A(f"  s_mov_b32 s{S_TSRD+2}, 16384")
    def set_static_blocks():
        for j in range(4):
            A(f"  s_add_u32 s{S_BO+j}, s{S_CUR}, {j*16384}")
    set_static_blocks()
    A(f"  s_lshl_b32 s{S_T0}, s{S_G}, 22")
    A(f"  s_lshl_b32 s{S_T2}, s{S_G}, 14")
    A("  s_waitcnt lgkmcnt(0)")
    if st_start:
        A(f"  s_memrealtime s[88:89]")
    A(f"  s_add_u32 s{S_KB}, s18, s{S_T0}")
    A(f"  s_addc_u32 s{S_KB+1}, s19, 0")
    A(f"  s_and_b32 s{S_KB+1}, s{S_KB+1}, 0xffff")
    A(f"  s_mov_b32 s{S_KSRD}, s{S_KB}")
    A(f"  s_mov_b32 s{S_KSRD+1}, s{S_KB+1}")
    A(f"  s_add_u32 s{S_TSRD}, s16, s{S_T2}")
    A(f"  s_addc_u32 s{S_TSRD+1}, s17, 0")
    A(f"  s_and_b32 s{S_TSRD+1}, s{S_TSRD+1}, 0xffff")

    wl = [0]
    def wwait(n, w):
        if n in bias and w == W:
            wl[0] += 1
            return [f"  s_waitcnt vmcnt({w})", f"  s_cbranch_vccnz L_w{wl[0]}", f"  s_waitcnt vmcnt({w-1})", f"L_w{wl[0]}:"]
        return [f"  s_waitcnt vmcnt({w-1})"]

    def kload(n, w, slot=0):
        g, jj = n >> 2, n & 3
        out = []
        if jj == 0:
            out.append(f"  s_add_u32 m0, s{S_LDSB}, {slot*16384+g*4096}")
        x = (8 * (g & 1) + jj) * 16
        t = V_T0 if (n & 1) == 0 else V_T1
        if x:
            out.append(f"  v_xor_b32 v{t}, {x}, v{V_KSRC}")
            va = t
        else:
            out.append(f"  s_nop 0")
            va = V_KSRC
        if w:
            out.extend(wwait(n, w))
        out.append(f"  buffer_load_dwordx4 v{va}, s[{S_KSRD}:{S_KSRD+3}], s{S_BO+g} offen offset:{jj*1024} {flags} lds")
        return out

    def vload(n, w):
        g, jj = n >> 2, n & 3
        out = []
        if w:
            out.extend(wwait(n, w))
        out.append(f"  buffer_load_dwordx4 {vr(V_V+4*n,4)}, v{V_VSRC}, s[{S_VSRD}:{S_VSRD+3}], s{S_BO+g} offen offset:{jj*1024} {flags}")
        return out

    for n in range(4):
        L.extend(kload(n, 0))
    if warm:
        A(f"  s_add_u32 s{S_VB}, s20, s{S_T0}")
        A(f"  s_addc_u32 s{S_VB+1}, s21, 0")
        A(f"  s_and_b32 s{S_VB+1}, s{S_VB+1}, 0xffff")
        A(f"  s_mov_b32 s{S_VSRD}, s{S_VB}")
        A(f"  s_mov_b32 s{S_VSRD+1}, s{S_VB+1}")
        A("  s_mov_b64 exec, 1")
        A(f"  buffer_load_dword v{V_AD+2}, v{V_VSRC}, s[{S_VSRD}:{S_VSRD+3}], s{S_BO} offen")
        A("  s_mov_b64 exec, -1")
    A(f"  s_add_u32 m0, s{S_T1}, {QBASE}")
    for jj in range(4):
        A(f"  v_xor_b32 v{V_X0}, {jj*32}, v{V_X1}")
        A(f"  buffer_load_dwordx4 v{V_X0}, s[{S_TSRD}:{S_TSRD+3}], s{S_T1} offen offset:{jj*1024} lds")
    A(f"  s_lshl_b32 s{S_T3}, s{S_S}, 2")
    A(f"  s_add_u32 s{S_T3}, s{S_T3}, s{S_W}")
    A(f"  s_lshl_b32 s{S_T4}, s{S_T3}, 9")
    A(f"  s_lshl_b32 s{S_T2}, s{S_G}, 13")
    A(f"  s_add_u32 s{S_TSRD}, s22, s{S_T2}")
    A(f"  s_addc_u32 s{S_TSRD+1}, s23, 0")
    A(f"  s_and_b32 s{S_TSRD+1}, s{S_TSRD+1}, 0xffff")
    A(f"  s_mov_b32 s{S_TSRD+2}, 8192")
    A(f"  s_lshl_b32 s{S_P}, s{S_W}, 10")
    A(f"  s_add_u32 m0, s{S_P}, {TBASE}")
    A(f"  v_and_b32 v{V_X0}, 0x1f0, v{V_VSRC}")
    A(f"  buffer_load_dwordx4 v{V_VSRC}, s[{S_TSRD}:{S_TSRD+3}], s{S_T4} offen lds")
    A(f"  s_add_u32 s{S_TSRD}, s24, s{S_T2}")
    A(f"  s_addc_u32 s{S_TSRD+1}, s25, 0")
    A(f"  s_and_b32 s{S_TSRD+1}, s{S_TSRD+1}, 0xffff")
    A(f"  buffer_load_dwordx4 {vr(V_V,4)}, v{V_X0}, s[{S_TSRD}:{S_TSRD+3}], s{S_T4} offen")
    A(f"  s_lshr_b32 s{S_T2}, s{S_G}, 3")
    A(f"  s_lshl_b32 s{S_T2}, s{S_T2}, 9")
    A(f"  s_add_u32 s{S_TSRD}, s26, s{S_T2}")
    A(f"  s_addc_u32 s{S_TSRD+1}, s27, 0")
    A(f"  s_and_b32 s{S_TSRD+1}, s{S_TSRD+1}, 0xffff")
    A(f"  s_mov_b32 s{S_TSRD+2}, 512")
    A(f"  s_lshl_b32 s{S_T4}, s{S_T3}, 1")
    A(f"  v_and_b32 v{V_X0}, 15, v{V_LANE}")
    A(f"  v_lshlrev_b32 v{V_X0}, 5, v{V_X0}")
    A(f"  buffer_load_ushort v63, v{V_X0}, s[{S_TSRD}:{S_TSRD+3}], s{S_T4} offen")
    for n in range(4, 16):
        L.extend(kload(n, 0))
    A(f"  s_add_u32 s{S_VB}, s20, s{S_T0}")
    A(f"  s_addc_u32 s{S_VB+1}, s21, 0")
    A(f"  s_and_b32 s{S_VB+1}, s{S_VB+1}, 0xffff")
    A(f"  s_mov_b32 s{S_VSRD}, s{S_VB}")
    A(f"  s_mov_b32 s{S_VSRD+1}, s{S_VB+1}")
    A(f"  v_lshrrev_b32 v{V_T0}, 5, v{V_LANE}")
    A(f"  v_and_b32 v{V_T1}, 31, v{V_LANE}")
    A(f"  v_and_b32 v{V_X0}, 24, v{V_T1}")
    A(f"  v_and_b32 v{V_X1}, 3, v{V_T1}")
    A(f"  v_lshl_add_u32 v{V_X0}, v{V_X1}, 1, v{V_X0}")
    A(f"  v_bfe_u32 v{V_X1}, v{V_T1}, 2, 1")
    A(f"  v_add_u32 v{V_X0}, v{V_X0}, v{V_X1}")
    A(f"  v_and_b32 v{V_X1}, 15, v{V_T1}")
    A(f"  v_xor_b32 v{V_X1}, v{V_X1}, v{V_T0}")
    A(f"  v_lshlrev_b32 v{V_X1}, 4, v{V_X1}")
    A(f"  v_lshl_add_u32 v{V_KRD}, v{V_X0}, 9, v{V_X1}")
    A(f"  v_add_u32 v{V_KRD}, s{S_LDSB}, v{V_KRD}")
    A(f"  v_lshl_add_u32 v{V_X1}, v{V_T1}, 9, v{V_X1}")
    A(f"  v_add_u32 v{V_X1}, {QBASE}, v{V_X1}")
    if bias:
        A(f"  s_getreg_b32 s{S_T2}, hwreg(HW_REG_XCC_ID, 0, 1)")
        A(f"  s_cmp_eq_u32 s{S_T2}, 0")
        A("  s_cselect_b64 vcc, -1, 0")
    A(f"  v_mov_b32 v{V_Z}, 0")
    A(f"  v_mov_b32 v{V_FLG}, 0")
    A(f"  s_lshl_b32 s{S_T2}, s{S_W}, 2")
    A(f"  s_add_u32 s{S_T2}, s{S_T2}, 16")
    A(f"  v_mov_b32 v{V_PCO}, s{S_T2}")
    A(f"  s_mov_b32 s{S_C}, {f32(C_SCALE)}")
    A(f"  s_mov_b32 s{S_PL}, 0x05040100")
    A(f"  s_mov_b32 s{S_PH}, 0x07060302")
    A(f"  s_mov_b32 s{S_TREE}, 1")
    A(f"  s_mov_b32 s{S_DSRD+3}, 0x20000")
    A(f"  s_mov_b32 s{S_CSRD+3}, 0x20000")
    A(f"  s_mov_b32 s{S_ST}, 0")
    if probe:
        A("  s_mov_b32 s88, 0"); A("  s_mov_b32 s89, 0")
    A(f"  s_mov_b32 s{S_CNT}, {N0-1}")
    A(f"  s_cmp_eq_u32 s{S_S}, 0")
    A(f"  s_cselect_b32 s{S_PRIV}, {1 if npriv else 2}, 2")
    A(f"  s_lshl_b32 s{S_T0}, s{S_G}, 2")
    A(f"  s_add_u32 s{S_DSRD}, s30, s{S_T0}")
    A(f"  s_addc_u32 s{S_DSRD+1}, s31, 0")
    A(f"  s_and_b32 s{S_DSRD+1}, s{S_DSRD+1}, 0xffff")
    A(f"  s_mov_b32 s{S_DSRD+2}, 4")
    if linein:
        A(f"  s_mul_i32 s{S_T0}, s{S_G}, {131072+256}")
    else:
        A(f"  s_lshl_b32 s{S_T0}, s{S_G}, 8")
        A(f"  s_add_u32 s{S_T0}, s{S_T0}, {WS_CNT}")
    A(f"  s_add_u32 s{S_CSRD}, s32, s{S_T0}")
    A(f"  s_addc_u32 s{S_CSRD+1}, s33, 0")
    A(f"  s_and_b32 s{S_CSRD+1}, s{S_CSRD+1}, 0xffff")
    A(f"  s_mov_b32 s{S_CSRD+2}, 32")
    if warm:
        A(f"  s_xor_b32 s{S_T2}, s{S_BO}, 0x200000")
        A(f"  s_lshl_b32 s{S_T0}, s{S_G}, 14")
        A(f"  s_add_u32 s{S_TSRD}, s28, s{S_T0}")
        A(f"  s_addc_u32 s{S_TSRD+1}, s29, 0")
        A(f"  s_and_b32 s{S_TSRD+1}, s{S_TSRD+1}, 0xffff")
        A("  s_mov_b64 exec, 1")
        A(f"  buffer_load_dword v{V_AD+2}, v{V_VSRC}, s[{S_KSRD}:{S_KSRD+3}], s{S_T2} offen nt")
        A(f"  buffer_load_dword v{V_AD+2}, v{V_VSRC}, s[{S_VSRD}:{S_VSRD+3}], s{S_T2} offen nt")
        A(f"  buffer_load_dword v{V_AD+2}, v{V_VSRC}, s[{S_TSRD}:{S_TSRD+3}], 0 offen nt")
        A("  s_mov_b64 exec, -1")
    A(f"  s_cmp_eq_u32 s{S_W}, 0")
    A("  s_cbranch_scc0 L_noticket")
    A(f"  v_mov_b32 v{V_TK}, 1")
    A("  s_mov_b64 exec, 1")
    A(f"  buffer_atomic_add v{V_TK}, v{V_Z}, s[{S_DSRD}:{S_DSRD+3}], 0 offen sc0")
    A("  s_mov_b64 exec, -1")
    A(f"  s_mov_b32 s{S_ST}, 1")
    A("L_noticket:")
    A(f"  v_lshrrev_b32 v{V_T0}, 5, v{V_LANE}")
    A(f"  v_lshlrev_b32 v{V_A}, 4, v{V_T0}")
    A(f"  s_add_u32 s{S_P}, s{S_P}, {TBASE}")
    A(f"  v_add_u32 v{V_A}, s{S_P}, v{V_A}")
    A(f"  v_sub_u32 v{V_T0}, 1, v{V_T0}")
    A(f"  v_mul_u32_u24 v{V_P}, 0x3f80, v{V_T0}")
    A(f"  v_cvt_f32_u32 v{V_L}, v{V_T0}")
    for k in range(1, 4):
        A(f"  v_mov_b32 v{V_P+k}, 0")
    for k in range(16):
        A(f"  v_mov_b32 v{V_VT+k}, 0")
    if st_start:
        A("  s_waitcnt vmcnt(19)")
        A(f"  s_memrealtime s[90:91]")
    A(f"  s_waitcnt vmcnt({15 if warm else 12})")
    A("  s_barrier")
    for x in range(8):
        A(f"  v_xor_b32 v{V_X0}, {x*32}, v{V_X1}")
        for hi in range(2):
            A(f"  ds_read_b128 {ar(A_Q+4*(x+8*hi),4)}, v{V_X0} offset:{hi*256}")
    A("  s_waitcnt lgkmcnt(0)")
    A("  s_branch L_s_sinit")

    def qk_chunks(slot=0):
        rd = []
        order = []
        for x in range(8):
            t = V_T0 if (x & 1) == 0 else V_T1
            if x:
                rd.append(f"  v_xor_b32 v{t}, {x*32}, v{V_KRD}")
                va = t
            else:
                va = V_KRD
            for hi in range(2):
                ks = x + 8 * hi
                i = len(order)
                rd.append(f"  ds_read_b128 {ar(A_K+4*i,4)}, v{va} offset:{slot*16384+hi*256}")
                order.append(ks)
        mf = []
        for i, ks in enumerate(order):
            mf.append([f"  s_waitcnt lgkmcnt({15-i})",
                       f"  v_mfma_f32_32x32x16_bf16 {vr(V_S,16)}, {ar(A_K+4*i,4)}, {ar(A_Q+4*ks,4)}, {vr(V_S,16)}"])
        return rd, mf

    def softmax_chunks():
        S = V_S
        c1 = ["  s_nop 7", "  s_nop 3"]
        c1.append(f"  v_max3_f32 v{V_A}, v{S}, v{S+1}, v{S+2}")
        for i in range(3, 15, 2):
            c1.append(f"  v_max3_f32 v{V_A}, v{V_A}, v{S+i}, v{S+i+1}")
        c1.append(f"  v_max_f32 v{V_A}, v{V_A}, v{S+15}")
        c1.append(f"  v_mul_f32 v{V_A}, s{S_C}, v{V_A}")
        c1.append(f"  v_mov_b32 v{V_B}, v{V_A}")
        c1.append("  s_nop 1")
        c1.append(f"  v_permlane32_swap_b32 v{V_A}, v{V_B}")
        c1.append("  s_nop 1")
        c1.append(f"  v_max3_f32 v{V_A}, v{V_A}, v{V_B}, v{V_MC}")
        c1.append(f"  v_sub_f32 v{V_AL}, v{V_MC}, v{V_A}")
        c1.append(f"  v_exp_f32 v{V_AL}, v{V_AL}")
        c1.append(f"  v_mov_b32 v{V_MC}, v{V_A}")
        c1.append(f"  v_mov_b32 v{V_AL+1}, v{V_AL}")
        c1.append(f"  v_mul_f32 v{V_L}, v{V_L}, v{V_AL}")
        c2 = []
        for hf in range(2):
            c = []
            for r in range(8 * hf, 8 * hf + 8):
                c.append(f"  v_fma_f32 v{S+r}, v{S+r}, s{S_C}, -v{V_MC}")
            for r in range(8 * hf, 8 * hf + 8):
                c.append(f"  v_exp_f32 v{S+r}, v{S+r}")
            c.append("  s_nop 0")
            for r in range(8 * hf, 8 * hf + 8):
                c.append(f"  v_add_f32 v{V_L}, v{V_L}, v{S+r}")
            for R in range(4 * hf, 4 * hf + 4):
                c.append(f"  v_cvt_pk_bf16_f32 v{V_P+R}, v{S+2*R}, v{S+2*R+1}")
            c2.append(c)
        return c1, c2

    def pv_piece(u, e, pop=None, alreg=None):
        o = []
        q = V_VT + 4 * (e & 3)
        sel = S_PL if (e & 1) == 0 else S_PH
        for r in range(4):
            lo = V_V + 4 * (8 * u + 2 * r) + (e >> 1)
            hi = V_V + 4 * (8 * u + 2 * r + 1) + (e >> 1)
            o.append(f"  v_perm_b32 v{q+r}, v{hi}, v{lo}, s{sel}")
        if u == 0:
            for r in range(0, 16, 2):
                if alreg is None:
                    o.append(f"  v_pk_mul_f32 {vr(V_O+16*e+r,2)}, {vr(V_O+16*e+r,2)}, {vr(V_AL,2)}")
                elif alreg % 2 == 0:
                    o.append(f"  v_pk_mul_f32 {vr(V_O+16*e+r,2)}, {vr(V_O+16*e+r,2)}, {vr(alreg,2)} op_sel_hi:[1,0]")
                else:
                    o.append(f"  v_pk_mul_f32 {vr(V_O+16*e+r,2)}, {vr(V_O+16*e+r,2)}, {vr(alreg-1,2)} op_sel:[0,1] op_sel_hi:[1,1]")
        o.append("  s_nop 1")
        o.append(f"  v_mfma_f32_32x32x16_bf16 {vr(V_O+16*e,16)}, {vr(q,4)}, {pop if pop else vr(V_P+4*u,4)}, {vr(V_O+16*e,16)}")
        return o

    def spread(pieces, first, last):
        ns = last - first + 1
        place = {}
        n = len(pieces)
        for i, p in enumerate(pieces):
            sl = first + (i * ns) // n if n > ns else first + i
            place.setdefault(sl, []).extend(p)
        return place

    def phaseB(w, hook=None):
        rd, mf = qk_chunks()
        c1, c2 = softmax_chunks()
        n0 = w - 1
        mfg = [rd + sum(mf[0:2], [])] + [sum(mf[i:i+3], []) for i in range(2, 14, 3)] + [sum(mf[14:16], [])]
        pieces = mfg + [c1] + c2
        place = spread(pieces, n0, 15)
        for n in range(16):
            if hook and n == cslot:
                hook()
            L.extend(vload(n, w))
            if n in place:
                L.extend(place[n])

    def phaseA(w):
        s0 = max(0, w - 9)
        s1 = max(w - 1, min(s0 + 8, 12))
        p0 = [pv_piece(0, e) for e in range(8)]
        p1 = [pv_piece(1, e) for e in range(8)]
        place = spread(p0, s0, s1 - 1)
        for k, v in spread(p1, s1, 15).items():
            place.setdefault(k, []).extend(v)
        for n in range(16):
            L.extend(kload(n, w))
            if n in place:
                L.extend(place[n])

    def claim_code(tag):
        A(f"L_claim{tag}:")
        A(f"  s_mov_b32 s{S_T1}, 0x40000")
        A(f"L_claimw{tag}:")
        A(f"  v_readfirstlane_b32 s{S_T0}, v{V_FLG}")
        A("  s_nop 3")
        A(f"  s_bitcmp1_b32 s{S_T0}, 16")
        A(f"  s_cbranch_scc1 L_flag_ok{tag}")
        A(f"  s_sub_u32 s{S_T1}, s{S_T1}, 1")
        A(f"  s_cmp_eq_u32 s{S_T1}, 0")
        A(f"  s_cbranch_scc1 L_flag_ok{tag}")
        A("  s_sleep 8")
        A(f"  buffer_load_dword v{V_FLG}, v{V_Z}, s[{S_DSRD}:{S_DSRD+3}], 0 offen sc1")
        A("  s_waitcnt vmcnt(0)")
        A(f"  s_branch L_claimw{tag}")
        A(f"L_flag_ok{tag}:")
        if NI:
            do_claim()

    def do_claim():
        A(f"  v_mov_b32 v{V_CLM}, 1")
        A("  s_mov_b64 exec, 1")
        A(f"  buffer_atomic_add v{V_CLM}, v{V_Z}, s[{S_CSRD}:{S_CSRD+3}], 0 offen sc0")
        A("  s_mov_b64 exec, -1")

    A("L_s_sinit:")
    def set_blocks(i):
        for j in range(4):
            A(f"  s_add_u32 s{S_BO+j}, s{S_CUR}, {i*65536+j*16384}")
    def init_step1():
        A(f"  s_cmp_eq_u32 s{S_ST}, 1")
        A("  s_cbranch_scc0 L_i1")
        A(f"  v_readfirstlane_b32 s{S_T0}, v{V_TK}")
        A(f"  s_mov_b32 s{S_ST}, 0")
        A("  s_nop 3")
        A(f"  s_and_b32 s{S_T0}, s{S_T0}, 0xff")
        A(f"  s_cmp_eq_u32 s{S_T0}, 0")
        A("  s_cbranch_scc0 L_i1")
        A(f"  v_mov_b32 v{V_TK}, 0")
        A(f"  v_lshlrev_b32 v{V_AD}, 2, v{V_LANE}")
        A("  s_mov_b64 exec, 0xff")
        A(f"  buffer_atomic_swap v{V_TK}, v{V_AD}, s[{S_CSRD}:{S_CSRD+3}], 0 offen sc0")
        A("  s_mov_b64 exec, -1")
        A(f"  s_mov_b32 s{S_ST}, 2")
        A("L_i1:")
    def init_step2():
        A(f"  s_cmp_eq_u32 s{S_ST}, 2")
        A("  s_cbranch_scc0 L_i2")
        A(f"  v_mov_b32 v{V_AD}, 0x10000")
        A("  s_mov_b64 exec, 1")
        A(f"  buffer_atomic_or v{V_AD}, v{V_Z}, s[{S_DSRD}:{S_DSRD+3}], 0 offen")
        A("  s_mov_b64 exec, -1")
        A("L_i2:")
    n0 = W - 1
    for i in range(N0):
        last = i == N0 - 1
        set_blocks(0 if last else i + 1)
        for r in range(16):
            A(f"  v_mov_b32 v{V_S+r}, 0")
        rd, mf = qk_chunks(i & 1)
        tp = []
        if i == 0:
            t1 = [f"  ds_read_b128 {ar(A_K+4*ks,4)}, v{V_A} offset:{ks*32}" for ks in range(16)]
            tm = []
            for ks in range(16):
                tm.append(f"  s_waitcnt lgkmcnt({15-ks})")
                tm.append(f"  v_mfma_f32_32x32x16_bf16 {vr(V_S,16)}, {ar(A_K+4*ks,4)}, {ar(A_Q+4*ks,4)}, {vr(V_S,16)}")
            t3 = []
            for e in range(8):
                q = V_VT + 4 * (e & 3)
                sel = S_PL if (e & 1) == 0 else S_PH
                t3.append(f"  v_perm_b32 v{q}, v{V_V+(e>>1)}, v{V_V+(e>>1)}, s{sel}")
                t3.append("  s_nop 1")
                t3.append(f"  v_mfma_f32_32x32x16_bf16 {vr(V_O+16*e,16)}, {vr(q,4)}, {vr(V_P,4)}, 0")
            t4 = [f"  s_mov_b32 s{S_T0}, {f32(MASK_K)}", f"  v_mov_b32 v{V_X0}, {f32(-MASK_K)}",
                  f"  v_lshlrev_b32 v63, 16, v63", f"  v_fma_f32 v63, v63, s{S_T0}, v{V_X0}",
                  f"  v_add_f32 v63, v63, v{V_S}", f"  v_mul_f32 v{V_MC}, s{S_C}, v63"]
            t4 += [f"  v_mov_b32 v{V_S+r}, 0" for r in range(16)]
            tp = [t1 + tm[:16], tm[16:], t3, t4]
        c1, c2 = softmax_chunks()
        c1 = c1 + [f"  v_mov_b32 v{V_VT+i}, v{V_AL}"]
        c2 = [c + [f"  v_accvgpr_write_b32 a{A_P+8*i+4*hf+k}, v{V_P+4*hf+k}" for k in range(4)] for hf, c in enumerate(c2)]
        mfg = [rd + sum(mf[0:2], [])] + [sum(mf[k:k+3], []) for k in range(2, 14, 3)] + [sum(mf[14:16], [])]
        pieces = mfg + [c1] + c2
        nv = WV - 1
        if last:
            place = spread(pieces, nv, 8 + nv - 1)
            mv = [f"  v_mov_b32 v{V_S+k}, v{V_VT+k}" for k in range(N0)]
            p0 = [pv_piece(0, e, ar(A_P, 4), V_S) for e in range(8)]
            p0[0] = mv + p0[0]
            if N0 > 1:
                for k, v in spread(p0, 8 + nv, 15).items():
                    place.setdefault(k, []).extend(v)
        else:
            place = spread(pieces, n0, 15)
        if tp:
            L.extend(tp[0] + tp[1] + tp[2] + tp[3] + ["  s_nop 1"])
        for n in range(16):
            L.extend(vload(n, WV) if last else kload(n, W, (i + 1) & 1))
            if n in place:
                L.extend(place[n])
        if i == 1: init_step1()
        if i == 3: init_step2()
    def s_hook_poll():
        A(f"  buffer_load_dword v{V_FLG}, v{V_Z}, s[{S_DSRD}:{S_DSRD+3}], 0 offen sc1")
    for i in range(1, N0):
        last = i == N0 - 1
        wv = WL if i >= N0 - nl else WV
        nv = wv - 1
        set_blocks(i)
        place = spread([pv_piece(1, e, ar(A_P + 8 * (i - 1) + 4, 4)) for e in range(8)], nv, 7)
        if not last:
            for k, v in spread([pv_piece(0, e, ar(A_P + 8 * i, 4), V_S + i) for e in range(8)], 8 + nv, 15).items():
                place.setdefault(k, []).extend(v)
        else:
            hand = [f"  v_accvgpr_read_b32 v{V_P+k}, a{A_P+8*i+k}" for k in range(8)]
            hand += [f"  v_mov_b32 v{V_AL}, v{V_S+i}", f"  v_mov_b32 v{V_AL+1}, v{V_S+i}"]
            place.setdefault(12, []).extend(hand)
        for n in range(16):
            if n == cslot and i == N0 - 2:
                s_hook_poll()
            if n == cslot and last:
                claim_code("_s")
            L.extend(vload(n, (16 if (last and n >= 8 and nl) else wv)))
            if n in place:
                L.extend(place[n])

    dyn_start = len(L)
    A("L_d_loop:")
    A(f"  s_cmp_eq_u32 s{S_PRIV}, 3")
    A("  s_cbranch_scc1 L_loop_end")
    A(f"  s_waitcnt vmcnt({16-cslot})")
    A(f"  v_readfirstlane_b32 s{S_P}, v{V_CLM}")
    A("  s_nop 3")
    A(f"  s_cmp_lt_u32 s{S_P}, {NI}")
    A("  s_cbranch_scc1 L_d_item")
    A(f"  s_cmp_eq_u32 s{S_PRIV}, 1")
    A("  s_cbranch_scc0 L_loop_end")
    A(f"  s_mov_b32 s{S_PRIV}, 3")
    A(f"  s_mul_i32 s{S_T0}, s{S_W}, {npriv}")
    A(f"  s_add_u32 s{S_T0}, s{S_T0}, {PB}")
    A(f"  s_mov_b32 s{S_T4}, {npriv}")
    A("  s_branch L_item_ok")
    A("L_d_item:")
    A("L_dyn_cache:")
    A(f"  s_mov_b32 s{S_T3}, s{S_P}")
    A(f"  s_lshl_b32 s{S_T0}, s{S_T3}, 2")
    A(f"  s_mov_b32 s{S_T4}, 4")
    if n2:
        A(f"  s_cmp_lt_u32 s{S_T3}, {n4}")
        A("  s_cbranch_scc1 L_item_ok")
        A(f"  s_lshl_b32 s{S_T0}, s{S_T3}, 1")
        A(f"  s_add_u32 s{S_T0}, s{S_T0}, {2*n4}")
        A(f"  s_mov_b32 s{S_T4}, 2")
    A("L_item_ok:")
    for j in range(4):
        A(f"  s_add_u32 s{S_T1}, s{S_T0}, {j}")
        A(f"  s_lshr_b32 s{S_T2}, s{S_T1}, 6"); A(f"  s_add_u32 s{S_T2}, s{S_T2}, {N0}"); A(f"  s_lshl_b32 s{S_T2}, s{S_T2}, 16")
        A(f"  s_bfe_u32 s{S_T3}, s{S_T1}, 0x20004"); A(f"  s_lshl_b32 s{S_T3}, s{S_T3}, 20"); A(f"  s_add_u32 s{S_T2}, s{S_T2}, s{S_T3}")
        A(f"  s_and_b32 s{S_T3}, s{S_T1}, 3"); A(f"  s_lshl_b32 s{S_T3}, s{S_T3}, 14"); A(f"  s_add_u32 s{S_T2}, s{S_T2}, s{S_T3}")
        A(f"  s_bfe_u32 s{S_T3}, s{S_T1}, 0x20002"); A(f"  s_lshl_b32 s{S_T3}, s{S_T3}, 12"); A(f"  s_add_u32 s{S_T2}, s{S_T2}, s{S_T3}")
        A(f"  s_cmp_gt_u32 s{S_T4}, {j}")
        A(f"  s_cselect_b32 s{S_BO+j}, s{S_T2}, 0x400000")
        A(f"  s_cselect_b32 s{S_BI+j}, 0, 0xff800000")
    A("L_tile_ready:")
    phaseA(W2)
    A("L_d_sinit:")
    for r in range(16):
        A(f"  v_mov_b32 v{V_S+r}, s{S_BI + (r>>2)}")
    A("L_d_phaseB:")
    def d_hook():
        A(f"  s_cmp_eq_u32 s{S_PRIV}, 3")
        A("  s_cbranch_scc1 L_d_noclaim")
        do_claim()
        A("L_d_noclaim:")
    phaseB(W2, d_hook)
    A(f"  s_mov_b32 s{S_VSRD}, s{S_VB}")
    A(f"  s_mov_b32 s{S_VSRD+1}, s{S_VB+1}")
    A(f"  s_mov_b32 s{S_VSRD+2}, 0x400000")
    A("  s_branch L_d_loop")

    if NI == 0:
        del L[dyn_start:]
    if drop:
        i0 = L.index("L_s_sinit:"); i1 = len(L)
        def keep(x):
            if "mfma" in drop and "v_mfma" in x: return False
            if "ds" in drop and ("ds_read" in x or ("lgkmcnt" in x and "lgkmcnt(0)" not in x)): return False
            if "valu" in drop and any(k in x for k in ("v_perm", "v_pk_mul", "v_exp", "v_fma", "v_add_f32", "v_cvt_pk", "v_max")): return False
            return True
        L[i0:i1] = [x for x in L[i0:i1] if keep(x)]
    A("L_loop_end:")
    A(f"  v_mov_b32 v{V_A}, v{V_L}")
    A(f"  v_mov_b32 v{V_B}, v{V_L}")
    A("  s_nop 1")
    A(f"  v_permlane32_swap_b32 v{V_A}, v{V_B}")
    A("  s_nop 1")
    A(f"  v_add_f32 v{V_L}, v{V_A}, v{V_B}")
    A(f"  v_and_b32 v{V_X0}, 31, v{V_LANE}")
    A(f"  v_lshlrev_b32 v{V_X0}, 3, v{V_X0}")
    A(f"  s_lshl_b32 s{S_T0}, s{S_W}, 8")
    A(f"  s_add_u32 s{S_T0}, s{S_T0}, {LDS_STAT}")
    A(f"  v_add_u32 v{V_X1}, s{S_T0}, v{V_X0}")
    A(f"  ds_write_b64 v{V_X1}, {vr(V_MC,2)}")
    A(f"  v_add_u32 v{V_T0}, s{S_LDSB}, v{V_VSRC}")
    A(f"  s_mov_b32 s{S_TSRD}, s32")
    A(f"  s_and_b32 s{S_TSRD+1}, s33, 0xffff")
    A(f"  s_mov_b32 s{S_TSRD+2}, 0x1000000")
    A(f"  s_mov_b32 s{S_RDY}, 0")
    if pub16:
        A(f"  s_lshl_b32 s{S_BO}, s{S_G}, 17")
        A(f"  s_lshl_b32 s{S_T2}, s{S_W}, 13")
        A(f"  s_add_u32 s{S_BO}, s{S_BO}, s{S_T2}")
        A(f"  s_add_u32 s{S_BO+1}, s{S_BO}, 4096")
    else:
        A(f"  s_lshl_b32 s{S_BO}, s{S_G}, 17")
        A(f"  s_lshl_b32 s{S_T2}, s{S_W}, 13")
        A(f"  s_add_u32 s{S_BO}, s{S_BO}, s{S_T2}")
        A(f"  s_lshl_b32 s{S_BO+1}, s{S_G}, 12")
        A(f"  s_lshl_b32 s{S_T2}, s{S_W}, 8")
        A(f"  s_add_u32 s{S_BO+1}, s{S_BO+1}, s{S_T2}")
        A(f"  s_add_u32 s{S_BO+1}, s{S_BO+1}, {WS_STAT}")
    A("  s_waitcnt vmcnt(8)")
    for e in range(8):
        L.extend(pv_piece(0, e))
    A(f"  s_cmp_eq_u32 s{S_S}, 0")
    A("  s_cbranch_scc0 L_nopoll0")
    A(f"  buffer_load_dword v{V_FLG}, v{V_PCO}, s[{S_CSRD}:{S_CSRD+3}], 0 offen sc1")
    A("  s_waitcnt vmcnt(1)")
    A("  s_branch L_lastpv")
    A("L_nopoll0:")
    A("  s_waitcnt vmcnt(0)")
    A("L_lastpv:")
    if stamps:
        A(f"  s_memrealtime s[{S_ST0+2}:{S_ST0+3}]")
        if noepi:
            A(f"  s_memrealtime s[{S_ST0+4}:{S_ST0+5}]")
            A("  s_branch L_fin")
        A("  s_waitcnt lgkmcnt(0)")
    for w in range(1, 4):
        A(f"  s_cmp_eq_u32 s{S_W}, {w}")
        A(f"  s_cbranch_scc1 L_wr{w}")
    for w in range(4):
        if w:
            A(f"L_wr{w}:")
        def wr(e):
            for wp in range(4):
                if wp != w:
                    A(f"  ds_write_b128 v{V_T0}, {vr(V_O+16*e+4*wp,4)} offset:{wp*8192+e*1024}")
        for e in range(8):
            L.extend(pv_piece(1, e))
            if e >= 2:
                wr(e - 2)
        A("  s_nop 7")
        wr(6)
        A("  s_nop 3")
        wr(7)
        if w < 3:
            A("  s_branch L_wr_done")
    A("L_wr_done:")

    PD = {1: 64, 2: 96, 3: 24}
    PH = {1: 64, 2: 80, 3: 96}
    PS = {1: 112, 2: 116, 3: 120}
    ctr = [0]
    def check_and_load(repoll):
        t = ctr[0]; ctr[0] += 1
        A(f"  v_readfirstlane_b32 s{S_T0}, v{V_FLG}")
        A("  s_nop 3")
        A(f"  s_andn2_b32 s{S_T0}, s{S_T0}, s{S_RDY}")
        A(f"  s_or_b32 s{S_RDY}, s{S_RDY}, s{S_T0}")
        for k in range(1, 4):
            A(f"  s_bitcmp1_b32 s{S_T0}, {k}")
            A(f"  s_cbranch_scc0 L_cl{t}_{k}")
            if pub16:
                A(f"  s_add_u32 s{S_T1}, s{S_BO}, {k*32768}")
                A(f"  s_add_u32 s{S_T2}, s{S_BO+1}, {k*32768}")
                A(f"  buffer_load_dwordx4 {vr(PS[k],4)}, v{V_VSRC}, s[{S_TSRD}:{S_TSRD+3}], s{S_T2} offen sc1")
                for i in range(4):
                    A(f"  buffer_load_dwordx4 {vr(PH[k]+4*i,4)}, v{V_VSRC}, s[{S_TSRD}:{S_TSRD+3}], s{S_T1} offen offset:{i*1024} sc1")
            else:
                A(f"  s_add_u32 s{S_T1}, s{S_BO+1}, {k*1024}")
                A(f"  buffer_load_dwordx2 {vr(V_S+2*k,2)}, v{V_X0}, s[{S_TSRD}:{S_TSRD+3}], s{S_T1} offen sc1")
                A(f"  s_add_u32 s{S_T1}, s{S_BO}, {k*32768}")
                A(f"  s_add_u32 s{S_T2}, s{S_BO}, {k*32768+4096}")
                for e in range(8):
                    so = S_T1 if e < 4 else S_T2
                    A(f"  buffer_load_dwordx4 {vr(PD[k]+4*e,4)}, v{V_VSRC}, s[{S_TSRD}:{S_TSRD+3}], s{so} offen offset:{(e&3)*1024} sc1")
            A(f"L_cl{t}_{k}:")
        if repoll:
            A(f"  s_and_b32 s{S_T0}, s{S_RDY}, 14")
            A(f"  s_cmp_eq_u32 s{S_T0}, 14")
            A(f"  s_cbranch_scc1 L_cl{t}_all")
            A(f"  buffer_load_dword v{V_FLG}, v{V_PCO}, s[{S_CSRD}:{S_CSRD+3}], 0 offen sc1")
            A(f"L_cl{t}_all:")

    A(f"  s_cmp_eq_u32 s{S_S}, 0")
    A("  s_cbranch_scc0 L_nopre")
    A("  s_waitcnt vmcnt(0)")
    check_and_load(True)
    A("L_nopre:")
    A("  s_waitcnt lgkmcnt(0)")
    A("  s_barrier")
    ST = [8, 10, 14, 56]
    A(f"  v_add_u32 v{V_X1}, {LDS_STAT}, v{V_X0}")
    for w in range(4):
        A(f"  ds_read_b64 {vr(ST[w],2)}, v{V_X1} offset:{w*256}")
    A(f"  s_lshl_b32 s{S_T0}, s{S_W}, 13")
    A(f"  v_add_u32 v{V_T0}, s{S_T0}, v{V_VSRC}")
    A(f"  v_add_u32 v{V_T1}, 0x10000, v{V_T0}")
    for w in range(4):
        A(f"  s_cmp_eq_u32 s{S_W}, {w}")
        A(f"  s_cbranch_scc1 L_rd{w}")
        for e in range(8):
            base = V_T0 if w < 2 else V_T1
            A(f"  ds_read_b128 {vr(V_O+16*e+4*w,4)}, v{base} offset:{(w&1)*32768+e*1024}")
        A(f"L_rd{w}:")
    A("  s_waitcnt lgkmcnt(15)")
    A(f"  v_max3_f32 v{V_MC}, v{ST[0]}, v{ST[1]}, v{ST[2]}")
    A(f"  v_max_f32 v{V_MC}, v{V_MC}, v{ST[3]}")
    for w in range(4):
        A(f"  v_sub_f32 v{ST[w]}, v{ST[w]}, v{V_MC}")
    for w in range(4):
        A(f"  v_exp_f32 v{ST[w]}, v{ST[w]}")
    A("  s_nop 0")
    A(f"  v_mul_f32 v{V_L}, v{ST[0]}, v{ST[0]+1}")
    for w in range(1, 4):
        A(f"  v_fma_f32 v{V_L}, v{ST[w]}, v{ST[w]+1}, v{V_L}")
    A(f"  s_lshl_b32 s{S_T0}, s{S_S}, 15")
    A(f"  s_add_u32 s{S_T1}, s{S_BO}, s{S_T0}")
    A(f"  s_add_u32 s{S_T2}, s{S_T1}, 4096")
    A(f"  s_cmp_eq_u32 s{S_S}, 0")
    A("  s_cbranch_scc1 L_comb_fma")
    def fma_e(e):
        o = V_O + 16 * e
        for h2 in range(2):
            A(f"  v_pk_mul_f32 {vr(o+2*h2,2)}, {vr(o+2*h2,2)}, {vr(ST[0],2)} op_sel_hi:[1,0]")
        for w in range(1, 4):
            for h2 in range(2):
                A(f"  v_pk_fma_f32 {vr(o+2*h2,2)}, {vr(o+4*w+2*h2,2)}, {vr(ST[w],2)}, {vr(o+2*h2,2)} op_sel_hi:[1,0,1]")
    if pub16:
        for e in range(8):
            A(f"  s_waitcnt lgkmcnt({7-e})")
            fma_e(e)
            o = V_O + 16 * e
            if e == 0:
                A(f"  v_max3_f32 v{V_X1}, |v{o}|, |v{o+1}|, |v{o+2}|")
                A(f"  v_max_f32 v{V_X1}, v{V_X1}, |v{o+3}|")
            else:
                A(f"  v_max3_f32 v{V_X1}, v{V_X1}, |v{o}|, |v{o+1}|")
                A(f"  v_max3_f32 v{V_X1}, v{V_X1}, |v{o+2}|, |v{o+3}|")
        A(f"  v_frexp_exp_i32_f32 v{V_X1}, v{V_X1}")
        A(f"  v_max_i32 v{V_X1}, -100, v{V_X1}")
        A(f"  v_min_i32 v{V_X1}, 64, v{V_X1}") if False else None
        A(f"  v_sub_u32 v{V_T1}, 14, v{V_X1}")
        A(f"  v_ldexp_f32 v{V_AL}, 1.0, v{V_T1}")
        A(f"  v_subrev_u32 v{V_T1}, 14, v{V_X1}")
        A(f"  v_ldexp_f32 v8, 1.0, v{V_T1}")
        for e in range(8):
            o = V_O + 16 * e
            for h2 in range(2):
                A(f"  v_pk_mul_f32 {vr(o+2*h2,2)}, {vr(o+2*h2,2)}, {vr(V_AL,2)} op_sel_hi:[1,0]")
            for h2 in range(2):
                A(f"  v_cvt_pk_f16_f32 v{64+2*e+h2}, v{o+2*h2}, v{o+2*h2+1}")
            if e & 1:
                A(f"  buffer_store_dwordx4 {vr(64+4*(e>>1),4)}, v{V_VSRC}, s[{S_TSRD}:{S_TSRD+3}], s{S_T1} offen offset:{(e>>1)*1024} {pubflags}")
        A(f"  buffer_store_dwordx4 {vr(V_MC,4)}, v{V_VSRC}, s[{S_TSRD}:{S_TSRD+3}], s{S_T2} offen {pubflags}")
    else:
        for e in range(8):
            A(f"  s_waitcnt lgkmcnt({7-e})")
            fma_e(e)
            so = S_T1 if e < 4 else S_T2
            A(f"  buffer_store_dwordx4 {vr(V_O+16*e,4)}, v{V_VSRC}, s[{S_TSRD}:{S_TSRD+3}], s{so} offen offset:{(e&3)*1024} {pubflags}")
        A(f"  s_lshl_b32 s{S_T0}, s{S_S}, 10")
        A(f"  s_add_u32 s{S_T1}, s{S_BO+1}, s{S_T0}")
        A(f"  buffer_store_dwordx2 {vr(V_MC,2)}, v{V_X0}, s[{S_TSRD}:{S_TSRD+3}], s{S_T1} offen {pubflags}")
    A(f"  s_lshl_b32 s{S_T0}, 1, s{S_S}")
    A(f"  v_mov_b32 v{V_AD}, s{S_T0}")
    A("  s_waitcnt vmcnt(0)")
    if stamps:
        A(f"  s_memrealtime s[{S_ST0+4}:{S_ST0+5}]")
    A("  s_mov_b64 exec, 1")
    A(f"  buffer_atomic_or v{V_AD}, v{V_PCO}, s[{S_CSRD}:{S_CSRD+3}], 0 offen")
    A("  s_mov_b64 exec, -1")
    A("  s_branch L_fin")
    A("L_comb_fma:")
    for e in range(8):
        A(f"  s_waitcnt lgkmcnt({7-e})")
        fma_e(e)
    if stamps:
        A(f"  s_memrealtime s[{S_ST0+4}:{S_ST0+5}]")
    S = V_S
    A(f"  s_lshl_b32 s{S_T0}, s{S_G}, 14")
    A(f"  s_add_u32 s{S_KSRD}, s28, s{S_T0}")
    A(f"  s_addc_u32 s{S_KSRD+1}, s29, 0")
    A(f"  s_and_b32 s{S_KSRD+1}, s{S_KSRD+1}, 0xffff")
    A(f"  s_mov_b32 s{S_KSRD+2}, 16384")
    A(f"  v_lshrrev_b32 v{V_T0}, 5, v{V_LANE}")
    A(f"  v_lshlrev_b32 v{V_T0}, 6, v{V_T0}")
    A(f"  v_lshl_add_u32 v{V_T0}, v{V_X0}, 6, v{V_T0}")
    A(f"  v_mov_b32 v{S}, v{V_MC}")
    A(f"  v_mov_b32 v{S+1}, v{V_L}")
    A(f"  s_mov_b32 s{S_CNT}, 0x40000")
    A("L_poll:")
    A(f"  s_and_b32 s{S_T0}, s{S_RDY}, 14")
    A(f"  s_cmp_eq_u32 s{S_T0}, 14")
    A("  s_cbranch_scc1 L_loaded")
    A(f"  s_sub_u32 s{S_CNT}, s{S_CNT}, 1")
    A(f"  s_cmp_eq_u32 s{S_CNT}, 0")
    A("  s_cbranch_scc1 L_loaded")
    A("  s_waitcnt vmcnt(0)")
    check_and_load(True)
    A("  s_branch L_poll")
    A("L_loaded:")
    A(f"  s_lshl_b32 s{S_T1}, s{S_W}, 7")
    A("  s_waitcnt vmcnt(0)")
    if pub16:
        for k in range(1, 4):
            A(f"  v_mov_b32 v{S+2*k}, v{PS[k]}")
            A(f"  v_mov_b32 v{S+2*k+1}, v{PS[k]+1}")
    A(f"  v_max3_f32 v{V_MC}, v{S}, v{S+2}, v{S+4}")
    A(f"  v_max_f32 v{V_MC}, v{V_MC}, v{S+6}")
    for w in range(4):
        A(f"  v_sub_f32 v{S+2*w}, v{S+2*w}, v{V_MC}")
    for w in range(4):
        A(f"  v_exp_f32 v{S+2*w}, v{S+2*w}")
    A("  s_nop 0")
    A(f"  v_mul_f32 v{V_L}, v{S}, v{S+1}")
    for w in range(1, 4):
        A(f"  v_fma_f32 v{V_L}, v{S+2*w}, v{S+2*w+1}, v{V_L}")
    A(f"  v_rcp_f32 v{V_L}, v{V_L}")
    A("  s_nop 0")
    for w in range(4):
        A(f"  v_mul_f32 v{S+2*w}, v{S+2*w}, v{V_L}")
    if pub16:
        for k in range(1, 4):
            A(f"  v_mul_f32 v{S+2*k}, v{S+2*k}, v{PS[k]+2}")
    for e in range(8):
        o = V_O + 16 * e
        for h2 in range(2):
            A(f"  v_pk_mul_f32 {vr(o+2*h2,2)}, {vr(o+2*h2,2)}, {vr(S,2)} op_sel_hi:[1,0]")
        for k in range(1, 4):
            if pub16:
                for j in range(4):
                    A(f"  v_fma_mix_f32 v{o+j}, v{PH[k]+2*e+(j>>1)}, v{S+2*k}, v{o+j} op_sel:[{j&1},0,0] op_sel_hi:[1,0,0]")
            else:
                for h2 in range(2):
                    A(f"  v_pk_fma_f32 {vr(o+2*h2,2)}, {vr(PD[k]+4*e+2*h2,2)}, {vr(S+2*k,2)}, {vr(o+2*h2,2)} op_sel_hi:[1,0,1]")
    OUTR = 32
    for j in range(4):
        for i in range(4):
            A(f"  v_cvt_pk_bf16_f32 v{OUTR+4*j+i}, v{V_O+16*(2*i)+j}, v{V_O+16*(2*i+1)+j}")
        A(f"  buffer_store_dwordx4 {vr(OUTR+4*j,4)}, v{V_T0}, s[{S_KSRD}:{S_KSRD+3}], s{S_T1} offen offset:{j*16}")
    if dbgtime:
        A("  s_waitcnt vmcnt(0)")
        A(f"  s_memrealtime s[{S_ST0+6}:{S_ST0+7}]")
        A("  s_waitcnt lgkmcnt(0)")
        A(f"  s_sub_u32 s{S_T0}, s{S_ST0+6}, s{S_ST0}")
        A(f"  s_lshl_b32 s{S_T0}, s{S_T0}, 17")
        A(f"  s_cmp_eq_u32 s{S_W}, 0")
        A("  s_cbranch_scc0 L_fin")
        A(f"  v_mov_b32 v{V_AD}, s{S_T0}")
        A("  s_mov_b64 exec, 1")
        A(f"  buffer_atomic_or v{V_AD}, v{V_Z}, s[{S_DSRD}:{S_DSRD+3}], 0 offen")
        A("  s_mov_b64 exec, -1")
    A("L_fin:")
    if stamps:
        A("  s_waitcnt vmcnt(0)")
        A(f"  s_memrealtime s[{S_ST0+6}:{S_ST0+7}]")
        A("  s_waitcnt lgkmcnt(0)")
        A(f"  s_lshl_b32 s{S_T0}, s{S_G}, 2")
        A(f"  s_add_u32 s{S_T0}, s{S_T0}, s{S_S}")
        A(f"  s_lshl_b32 s{S_T0}, s{S_T0}, 2")
        A(f"  s_add_u32 s{S_T0}, s{S_T0}, s{S_W}")
        A(f"  s_lshl_b32 s{S_T0}, s{S_T0}, 5")
        A(f"  s_add_u32 s{S_T0}, s{S_T0}, 0x30000000")
        A(f"  s_cmp_eq_u32 s{S_S}, 0")
        A(f"  s_cselect_b32 s{S_T4}, 0x40000000, 0")
        A(f"  s_or_b32 s{S_ST0+7}, s{S_ST0+7}, s{S_T4}")
        if st_start:
            for i in range(4):
                A(f"  s_mov_b32 s{S_ST0+2+i}, s{88+i}")
        for i in range(8):
            A(f"  v_mov_b32 v{V_S+i}, s{S_ST0+i}")
        A(f"  v_mov_b32 v{V_X0}, s{S_T0}")
        A(f"  v_cmp_eq_u32 vcc, 0, v{V_LANE}")
        A(f"  s_and_saveexec_b64 s[{S_EX}:{S_EX+1}], vcc")
        A(f"  global_store_dwordx4 v{V_X0}, {vr(V_S,4)}, s[32:33]")
        A(f"  global_store_dwordx4 v{V_X0}, {vr(V_S+4,4)}, s[32:33] offset:16")
    A("L_done:")
    A("  s_endpgm")
    A('.section .rodata,"a"')
    A(".p2align 6")
    A(f".amdhsa_kernel {KN}")
    A("  .amdhsa_next_free_vgpr 512")
    A("  .amdhsa_next_free_sgpr 96")
    A("  .amdhsa_accum_offset 256")
    A("  .amdhsa_group_segment_fixed_size 0")
    A("  .amdhsa_kernarg_size 72")
    A("  .amdhsa_user_sgpr_count 2")
    A("  .amdhsa_user_sgpr_kernarg_segment_ptr 1")
    A("  .amdhsa_system_sgpr_workgroup_id_x 1")
    A(".end_amdhsa_kernel")
    return "\n".join(L) + "\n"

def emit(variants, g=gen):
    import subprocess, json
    names = []
    for n, kw in variants.items():
        p = f"bench/{n}.s"
        open(p, "w").write(g(**kw))
        r = subprocess.run(["clang", "-x", "assembler", "-target", "amdgcn-amd-amdhsa", "-mcpu=gfx950", "-c", p, "-o", "x.o"], capture_output=True, text=True)
        if r.returncode:
            print("FAIL", n, r.stderr[:1500])
        names.append(f"bench/{n}.s")
    print(" ".join(names))
    print(json.dumps(["bench/run_bench.py", "cdna_kernels/cdna_launch.py", "cdna_kernels/cdna_unwritten_srd_check.py"] + names))

if __name__ == "__main__":
    B = dict(W=5, W2=12, N0=16, stamps=True, wgmap="rot", cslot=6, npriv=0)
    variants = {
        "k12_N16": dict(B),
        "k12_N16_l1": dict(B, nl=1),
        "k12_N16_l2": dict(B, nl=2),
        "k12_N16_l3": dict(B, nl=3),
        "k12_N16_l5": dict(B, nl=5),
        "k12_N16_l3_7": dict(B, nl=3, WL=7),
        "k12_N15": dict(B, N0=15),
        "k12_N15_l2": dict(B, N0=15, nl=2),
    }
    emit(variants)
```

```python
import gen_attn11
B = dict(W=5, W2=12, N0=16, wgmap="rot", cslot=6, npriv=0, nl=1, bias=(2, 10))
s = gen_attn11.gen(**B)
doc = """; ---------------------------------------------------------------------------------------------
; ---------------------------------------------------------------------------------------------
"""
s = s.replace(".text\n", ".text\n" + doc, 1)
open("standalone__tree_speculative_verify_tree_attention_over_candidate_token_tree__sampling.s", "w").write(s)
print(len(s))
```

```python
import struct, sys

KN = "standalone__tree_speculative_verify_tree_attention_over_candidate_token_tree__sampling_kernel"
HDR = open("standalone__tree_speculative_verify_tree_attention_over_candidate_token_tree__sampling.s.ref").read().split("; Override")[0]

def f32(x):
    return "0x%08x" % struct.unpack("<I", struct.pack("<f", x))[0]

C_SCALE = 1.4426950408889634 / 16.0
MASK_K = 1.6e10

V_LANE, V_KSRC, V_VSRC, V_KRD, V_T0, V_T1 = 0, 1, 2, 3, 4, 5
V_MC, V_L = 6, 7
V_A, V_B = 8, 9
V_AL = 10
V_X0, V_X1 = 12, 13
V_CLM = 14
V_TK = 15
V_S = 16
V_P = 32
V_VT = 40
V_AD = 56
V_Z = 60
V_FLG = 61
V_PCO = 62
V_V = 64
V_O = 128
A_Q = 0
A_K = 64
A_P = 128

S_W = 3
S_KSRD, S_VSRD = 8, 12
S_TSRD = 36
S_C = 40
S_PL, S_PH = 41, 42
S_LDSB = 43
S_BO = 44
S_BI = 48
S_G, S_S = 52, 53
S_CNT = 54
S_CUR = 55
S_T0, S_T1, S_T2 = 56, 57, 58
S_TREE = 59
S_KB, S_VB = 60, 62
S_ST0 = 64
S_DSRD = 72
S_CSRD = 76
S_T3 = 80
S_ST = 81
S_P = 82
S_T4 = 83
S_EX = 84
S_PRIV = 86
S_RDY = 87
WS_CNT = 0x1000000
WS_STAT = 0x800000
QBASE = 0x20400 + 0x400 - 0x400 + 1024 - 1024
QBASE = 0x20400
LDS_STAT = 0x20000

def vr(r, n=1):
    return f"v{r}" if n == 1 else f"v[{r}:{r+n-1}]"
def ar(r, n=1):
    return f"a{r}" if n == 1 else f"a[{r}:{r+n-1}]"

def gen(W=8, W2=12, N0=13, npriv=4, stamps=False, flags="nt", wgmap="adj", n2=0, noepi=False, pubflags="sc1", drop=(), cslot=0, st_start=False, pub16=True, probe=False, warm=False, linein=False, dbgtime=False, WV=None, WL=8, nl=0, bias=(), outflags=""):
    WV = W if WV is None else WV
    L = []
    A = L.append
    LDS = 128 * 1024 + 1024 + 16384 + 4096
    TBASE = QBASE + 16384
    PB = 16 * (16 - N0) * 4 - 4 * npriv
    n4 = (PB - 2 * n2) // 4
    assert n4 * 4 + 2 * n2 == PB
    NI = n4 + n2
    A(HDR.rstrip("\n"))
    A(f"; @launch grid=(256,1,1) block=(256,1,1) lds={LDS}")
    A('.amdgcn_target "amdgcn-amd-amdhsa--gfx950"')
    A(".text")
    A(f".globl {KN}")
    A(".p2align 8")
    A(f".type {KN},@function")
    A(f"{KN}:")
    A("  s_cmp_ge_u32 s2, 256")
    A("  s_cbranch_scc1 L_done")
    if stamps or dbgtime:
        A(f"  s_memrealtime s[{S_ST0}:{S_ST0+1}]")
    A("  s_load_dwordx16 s[16:31], s[0:1], 0")
    A("  s_load_dwordx2 s[32:33], s[0:1], 64")
    A(f"  v_lshrrev_b32 v{V_T0}, 6, v0")
    A(f"  v_and_b32 v{V_LANE}, 63, v0")
    A(f"  v_readfirstlane_b32 s{S_W}, v{V_T0}")
    if wgmap == "adj":
        A(f"  s_lshr_b32 s{S_G}, s2, 2")
        A(f"  s_and_b32 s{S_S}, s2, 3")
    elif wgmap == "rot":
        A(f"  s_lshr_b32 s{S_G}, s2, 2")
        A(f"  s_lshr_b32 s{S_S}, s2, 3")
        A(f"  s_add_u32 s{S_S}, s{S_S}, s2")
        A(f"  s_and_b32 s{S_S}, s{S_S}, 3")
    A(f"  v_lshrrev_b32 v{V_T0}, 5, v{V_LANE}")
    A(f"  v_and_b32 v{V_T1}, 31, v{V_LANE}")
    A(f"  v_lshlrev_b32 v{V_VSRC}, 4, v{V_LANE}")
    A(f"  v_lshlrev_b32 v{V_X0}, 6, v{V_T0}")
    A(f"  v_xor_b32 v{V_KSRC}, v{V_VSRC}, v{V_X0}")
    A(f"  v_lshlrev_b32 v{V_X1}, 4, v{V_T0}")
    A(f"  v_xor_b32 v{V_X1}, v{V_X1}, v{V_VSRC}")
    A(f"  s_and_b32 s{S_T2}, s{S_W}, 1")
    A(f"  s_lshl_b32 s{S_T2}, s{S_T2}, 7")
    A(f"  v_xor_b32 v{V_X1}, s{S_T2}, v{V_X1}")
    A(f"  s_lshl_b32 s{S_LDSB}, s{S_W}, 15")
    A(f"  s_lshl_b32 s{S_CUR}, s{S_S}, 20")
    A(f"  s_lshl_b32 s{S_T1}, s{S_W}, 12")
    A(f"  s_add_u32 s{S_CUR}, s{S_CUR}, s{S_T1}")
    A(f"  s_mov_b32 s{S_KSRD+3}, 0x20000")
    A(f"  s_mov_b32 s{S_VSRD+3}, 0x20000")
    A(f"  s_mov_b32 s{S_TSRD+3}, 0x20000")
    A(f"  s_mov_b32 s{S_KSRD+2}, 0x400000")
    A(f"  s_mov_b32 s{S_VSRD+2}, 0x400000")
    A(f"  s_mov_b32 s{S_TSRD+2}, 16384")
    def set_static_blocks():
        for j in range(4):
            A(f"  s_add_u32 s{S_BO+j}, s{S_CUR}, {j*16384}")
    set_static_blocks()
    A(f"  s_lshl_b32 s{S_T0}, s{S_G}, 22")
    A(f"  s_lshl_b32 s{S_T2}, s{S_G}, 14")
    A("  s_waitcnt lgkmcnt(0)")
    if st_start:
        A(f"  s_memrealtime s[88:89]")
    A(f"  s_add_u32 s{S_KB}, s18, s{S_T0}")
    A(f"  s_addc_u32 s{S_KB+1}, s19, 0")
    A(f"  s_and_b32 s{S_KB+1}, s{S_KB+1}, 0xffff")
    A(f"  s_mov_b32 s{S_KSRD}, s{S_KB}")
    A(f"  s_mov_b32 s{S_KSRD+1}, s{S_KB+1}")
    A(f"  s_add_u32 s{S_TSRD}, s16, s{S_T2}")
    A(f"  s_addc_u32 s{S_TSRD+1}, s17, 0")
    A(f"  s_and_b32 s{S_TSRD+1}, s{S_TSRD+1}, 0xffff")

    wl = [0]
    def wwait(n, w):
        if n in bias and w == W:
            wl[0] += 1
            return [f"  s_waitcnt vmcnt({w})", f"  s_cbranch_vccnz L_w{wl[0]}", f"  s_waitcnt vmcnt({w-1})", f"L_w{wl[0]}:"]
        return [f"  s_waitcnt vmcnt({w-1})"]

    def kload(n, w, slot=0):
        g, jj = n >> 2, n & 3
        out = []
        if jj == 0:
            out.append(f"  s_add_u32 m0, s{S_LDSB}, {slot*16384+g*4096}")
        x = (8 * (g & 1) + jj) * 16
        t = V_T0 if (n & 1) == 0 else V_T1
        if x:
            out.append(f"  v_xor_b32 v{t}, {x}, v{V_KSRC}")
            va = t
        else:
            out.append(f"  s_nop 0")
            va = V_KSRC
        if w:
            out.extend(wwait(n, w))
        out.append(f"  buffer_load_dwordx4 v{va}, s[{S_KSRD}:{S_KSRD+3}], s{S_BO+g} offen offset:{jj*1024} {flags} lds")
        return out

    def vload(n, w):
        g, jj = n >> 2, n & 3
        out = []
        if w:
            out.extend(wwait(n, w))
        out.append(f"  buffer_load_dwordx4 {vr(V_V+4*n,4)}, v{V_VSRC}, s[{S_VSRD}:{S_VSRD+3}], s{S_BO+g} offen offset:{jj*1024} {flags}")
        return out

    for n in range(4):
        L.extend(kload(n, 0))
    if warm:
        A(f"  s_add_u32 s{S_VB}, s20, s{S_T0}")
        A(f"  s_addc_u32 s{S_VB+1}, s21, 0")
        A(f"  s_and_b32 s{S_VB+1}, s{S_VB+1}, 0xffff")
        A(f"  s_mov_b32 s{S_VSRD}, s{S_VB}")
        A(f"  s_mov_b32 s{S_VSRD+1}, s{S_VB+1}")
        A("  s_mov_b64 exec, 1")
        A(f"  buffer_load_dword v{V_AD+2}, v{V_VSRC}, s[{S_VSRD}:{S_VSRD+3}], s{S_BO} offen")
        A("  s_mov_b64 exec, -1")
    A(f"  s_add_u32 m0, s{S_T1}, {QBASE}")
    for jj in range(4):
        A(f"  v_xor_b32 v{V_X0}, {jj*32}, v{V_X1}")
        A(f"  buffer_load_dwordx4 v{V_X0}, s[{S_TSRD}:{S_TSRD+3}], s{S_T1} offen offset:{jj*1024} lds")
    A(f"  s_lshl_b32 s{S_T3}, s{S_S}, 2")
    A(f"  s_add_u32 s{S_T3}, s{S_T3}, s{S_W}")
    A(f"  s_lshl_b32 s{S_T4}, s{S_T3}, 9")
    A(f"  s_lshl_b32 s{S_T2}, s{S_G}, 13")
    A(f"  s_add_u32 s{S_TSRD}, s22, s{S_T2}")
    A(f"  s_addc_u32 s{S_TSRD+1}, s23, 0")
    A(f"  s_and_b32 s{S_TSRD+1}, s{S_TSRD+1}, 0xffff")
    A(f"  s_mov_b32 s{S_TSRD+2}, 8192")
    A(f"  s_lshl_b32 s{S_P}, s{S_W}, 10")
    A(f"  s_add_u32 m0, s{S_P}, {TBASE}")
    A(f"  v_and_b32 v{V_X0}, 0x1f0, v{V_VSRC}")
    A(f"  buffer_load_dwordx4 v{V_VSRC}, s[{S_TSRD}:{S_TSRD+3}], s{S_T4} offen lds")
    A(f"  s_add_u32 s{S_TSRD}, s24, s{S_T2}")
    A(f"  s_addc_u32 s{S_TSRD+1}, s25, 0")
    A(f"  s_and_b32 s{S_TSRD+1}, s{S_TSRD+1}, 0xffff")
    A(f"  buffer_load_dwordx4 {vr(V_V,4)}, v{V_X0}, s[{S_TSRD}:{S_TSRD+3}], s{S_T4} offen")
    A(f"  s_lshr_b32 s{S_T2}, s{S_G}, 3")
    A(f"  s_lshl_b32 s{S_T2}, s{S_T2}, 9")
    A(f"  s_add_u32 s{S_TSRD}, s26, s{S_T2}")
    A(f"  s_addc_u32 s{S_TSRD+1}, s27, 0")
    A(f"  s_and_b32 s{S_TSRD+1}, s{S_TSRD+1}, 0xffff")
    A(f"  s_mov_b32 s{S_TSRD+2}, 512")
    A(f"  s_lshl_b32 s{S_T4}, s{S_T3}, 1")
    A(f"  v_and_b32 v{V_X0}, 15, v{V_LANE}")
    A(f"  v_lshlrev_b32 v{V_X0}, 5, v{V_X0}")
    A(f"  buffer_load_ushort v63, v{V_X0}, s[{S_TSRD}:{S_TSRD+3}], s{S_T4} offen")
    for n in range(4, 16):
        L.extend(kload(n, 0))
    A(f"  s_add_u32 s{S_VB}, s20, s{S_T0}")
    A(f"  s_addc_u32 s{S_VB+1}, s21, 0")
    A(f"  s_and_b32 s{S_VB+1}, s{S_VB+1}, 0xffff")
    A(f"  s_mov_b32 s{S_VSRD}, s{S_VB}")
    A(f"  s_mov_b32 s{S_VSRD+1}, s{S_VB+1}")
    A(f"  v_lshrrev_b32 v{V_T0}, 5, v{V_LANE}")
    A(f"  v_and_b32 v{V_T1}, 31, v{V_LANE}")
    A(f"  v_and_b32 v{V_X0}, 24, v{V_T1}")
    A(f"  v_and_b32 v{V_X1}, 3, v{V_T1}")
    A(f"  v_lshl_add_u32 v{V_X0}, v{V_X1}, 1, v{V_X0}")
    A(f"  v_bfe_u32 v{V_X1}, v{V_T1}, 2, 1")
    A(f"  v_add_u32 v{V_X0}, v{V_X0}, v{V_X1}")
    A(f"  v_and_b32 v{V_X1}, 15, v{V_T1}")
    A(f"  v_xor_b32 v{V_X1}, v{V_X1}, v{V_T0}")
    A(f"  v_lshlrev_b32 v{V_X1}, 4, v{V_X1}")
    A(f"  v_lshl_add_u32 v{V_KRD}, v{V_X0}, 9, v{V_X1}")
    A(f"  v_add_u32 v{V_KRD}, s{S_LDSB}, v{V_KRD}")
    A(f"  v_lshl_add_u32 v{V_X1}, v{V_T1}, 9, v{V_X1}")
    A(f"  v_add_u32 v{V_X1}, {QBASE}, v{V_X1}")
    if bias:
        A(f"  s_cmp_lg_u32 s{S_S}, 0")
        A("  s_cselect_b64 vcc, -1, 0")
    A(f"  v_mov_b32 v{V_Z}, 0")
    A(f"  v_mov_b32 v{V_FLG}, 0")
    A(f"  s_lshl_b32 s{S_T2}, s{S_W}, 2")
    A(f"  s_add_u32 s{S_T2}, s{S_T2}, 16")
    A(f"  v_mov_b32 v{V_PCO}, s{S_T2}")
    A(f"  s_mov_b32 s{S_C}, {f32(C_SCALE)}")
    A(f"  s_mov_b32 s{S_PL}, 0x05040100")
    A(f"  s_mov_b32 s{S_PH}, 0x07060302")
    A(f"  s_mov_b32 s{S_TREE}, 1")
    A(f"  s_mov_b32 s{S_DSRD+3}, 0x20000")
    A(f"  s_mov_b32 s{S_CSRD+3}, 0x20000")
    A(f"  s_mov_b32 s{S_ST}, 0")
    if probe:
        A("  s_mov_b32 s88, 0"); A("  s_mov_b32 s89, 0")
    A(f"  s_mov_b32 s{S_CNT}, {N0-1}")
    A(f"  s_cmp_eq_u32 s{S_S}, 0")
    A(f"  s_cselect_b32 s{S_PRIV}, {1 if npriv else 2}, 2")
    A(f"  s_lshl_b32 s{S_T0}, s{S_G}, 2")
    A(f"  s_add_u32 s{S_DSRD}, s30, s{S_T0}")
    A(f"  s_addc_u32 s{S_DSRD+1}, s31, 0")
    A(f"  s_and_b32 s{S_DSRD+1}, s{S_DSRD+1}, 0xffff")
    A(f"  s_mov_b32 s{S_DSRD+2}, 4")
    if linein:
        A(f"  s_mul_i32 s{S_T0}, s{S_G}, {131072+256}")
    else:
        A(f"  s_lshl_b32 s{S_T0}, s{S_G}, 8")
        A(f"  s_add_u32 s{S_T0}, s{S_T0}, {WS_CNT}")
    A(f"  s_add_u32 s{S_CSRD}, s32, s{S_T0}")
    A(f"  s_addc_u32 s{S_CSRD+1}, s33, 0")
    A(f"  s_and_b32 s{S_CSRD+1}, s{S_CSRD+1}, 0xffff")
    A(f"  s_mov_b32 s{S_CSRD+2}, 32")
    if warm:
        A(f"  s_xor_b32 s{S_T2}, s{S_BO}, 0x200000")
        A(f"  s_lshl_b32 s{S_T0}, s{S_G}, 14")
        A(f"  s_add_u32 s{S_TSRD}, s28, s{S_T0}")
        A(f"  s_addc_u32 s{S_TSRD+1}, s29, 0")
        A(f"  s_and_b32 s{S_TSRD+1}, s{S_TSRD+1}, 0xffff")
        A("  s_mov_b64 exec, 1")
        A(f"  buffer_load_dword v{V_AD+2}, v{V_VSRC}, s[{S_KSRD}:{S_KSRD+3}], s{S_T2} offen nt")
        A(f"  buffer_load_dword v{V_AD+2}, v{V_VSRC}, s[{S_VSRD}:{S_VSRD+3}], s{S_T2} offen nt")
        A(f"  buffer_load_dword v{V_AD+2}, v{V_VSRC}, s[{S_TSRD}:{S_TSRD+3}], 0 offen nt")
        A("  s_mov_b64 exec, -1")
    A(f"  s_cmp_eq_u32 s{S_W}, 0")
    A("  s_cbranch_scc0 L_noticket")
    A(f"  v_mov_b32 v{V_TK}, 1")
    A("  s_mov_b64 exec, 1")
    A(f"  buffer_atomic_add v{V_TK}, v{V_Z}, s[{S_DSRD}:{S_DSRD+3}], 0 offen sc0")
    A("  s_mov_b64 exec, -1")
    A(f"  s_mov_b32 s{S_ST}, 1")
    A("L_noticket:")
    A(f"  v_lshrrev_b32 v{V_T0}, 5, v{V_LANE}")
    A(f"  v_lshlrev_b32 v{V_A}, 4, v{V_T0}")
    A(f"  s_add_u32 s{S_P}, s{S_P}, {TBASE}")
    A(f"  v_add_u32 v{V_A}, s{S_P}, v{V_A}")
    A(f"  v_sub_u32 v{V_T0}, 1, v{V_T0}")
    A(f"  v_mul_u32_u24 v{V_P}, 0x3f80, v{V_T0}")
    A(f"  v_cvt_f32_u32 v{V_L}, v{V_T0}")
    for k in range(1, 4):
        A(f"  v_mov_b32 v{V_P+k}, 0")
    for k in range(16):
        A(f"  v_mov_b32 v{V_VT+k}, 0")
    if st_start:
        A("  s_waitcnt vmcnt(19)")
        A(f"  s_memrealtime s[90:91]")
    A(f"  s_waitcnt vmcnt({15 if warm else 12})")
    A("  s_barrier")
    for x in range(8):
        A(f"  v_xor_b32 v{V_X0}, {x*32}, v{V_X1}")
        for hi in range(2):
            A(f"  ds_read_b128 {ar(A_Q+4*(x+8*hi),4)}, v{V_X0} offset:{hi*256}")
    A("  s_waitcnt lgkmcnt(0)")
    A("  s_branch L_s_sinit")

    def qk_chunks(slot=0):
        rd = []
        order = []
        for x in range(8):
            t = V_T0 if (x & 1) == 0 else V_T1
            if x:
                rd.append(f"  v_xor_b32 v{t}, {x*32}, v{V_KRD}")
                va = t
            else:
                va = V_KRD
            for hi in range(2):
                ks = x + 8 * hi
                i = len(order)
                rd.append(f"  ds_read_b128 {ar(A_K+4*i,4)}, v{va} offset:{slot*16384+hi*256}")
                order.append(ks)
        mf = []
        for i, ks in enumerate(order):
            mf.append([f"  s_waitcnt lgkmcnt({15-i})",
                       f"  v_mfma_f32_32x32x16_bf16 {vr(V_S,16)}, {ar(A_K+4*i,4)}, {ar(A_Q+4*ks,4)}, {vr(V_S,16)}"])
        return rd, mf

    def softmax_chunks():
        S = V_S
        c1 = ["  s_nop 7", "  s_nop 3"]
        c1.append(f"  v_max3_f32 v{V_A}, v{S}, v{S+1}, v{S+2}")
        for i in range(3, 15, 2):
            c1.append(f"  v_max3_f32 v{V_A}, v{V_A}, v{S+i}, v{S+i+1}")
        c1.append(f"  v_max_f32 v{V_A}, v{V_A}, v{S+15}")
        c1.append(f"  v_mul_f32 v{V_A}, s{S_C}, v{V_A}")
        c1.append(f"  v_mov_b32 v{V_B}, v{V_A}")
        c1.append("  s_nop 1")
        c1.append(f"  v_permlane32_swap_b32 v{V_A}, v{V_B}")
        c1.append("  s_nop 1")
        c1.append(f"  v_max3_f32 v{V_A}, v{V_A}, v{V_B}, v{V_MC}")
        c1.append(f"  v_sub_f32 v{V_AL}, v{V_MC}, v{V_A}")
        c1.append(f"  v_exp_f32 v{V_AL}, v{V_AL}")
        c1.append(f"  v_mov_b32 v{V_MC}, v{V_A}")
        c1.append(f"  v_mov_b32 v{V_AL+1}, v{V_AL}")
        c1.append(f"  v_mul_f32 v{V_L}, v{V_L}, v{V_AL}")
        c2 = []
        for hf in range(2):
            c = []
            for r in range(8 * hf, 8 * hf + 8):
                c.append(f"  v_fma_f32 v{S+r}, v{S+r}, s{S_C}, -v{V_MC}")
            for r in range(8 * hf, 8 * hf + 8):
                c.append(f"  v_exp_f32 v{S+r}, v{S+r}")
            c.append("  s_nop 0")
            for r in range(8 * hf, 8 * hf + 8):
                c.append(f"  v_add_f32 v{V_L}, v{V_L}, v{S+r}")
            for R in range(4 * hf, 4 * hf + 4):
                c.append(f"  v_cvt_pk_bf16_f32 v{V_P+R}, v{S+2*R}, v{S+2*R+1}")
            c2.append(c)
        return c1, c2

    def pv_piece(u, e, pop=None, alreg=None):
        o = []
        q = V_VT + 4 * (e & 3)
        sel = S_PL if (e & 1) == 0 else S_PH
        for r in range(4):
            lo = V_V + 4 * (8 * u + 2 * r) + (e >> 1)
            hi = V_V + 4 * (8 * u + 2 * r + 1) + (e >> 1)
            o.append(f"  v_perm_b32 v{q+r}, v{hi}, v{lo}, s{sel}")
        if u == 0:
            for r in range(0, 16, 2):
                if alreg is None:
                    o.append(f"  v_pk_mul_f32 {vr(V_O+16*e+r,2)}, {vr(V_O+16*e+r,2)}, {vr(V_AL,2)}")
                elif alreg % 2 == 0:
                    o.append(f"  v_pk_mul_f32 {vr(V_O+16*e+r,2)}, {vr(V_O+16*e+r,2)}, {vr(alreg,2)} op_sel_hi:[1,0]")
                else:
                    o.append(f"  v_pk_mul_f32 {vr(V_O+16*e+r,2)}, {vr(V_O+16*e+r,2)}, {vr(alreg-1,2)} op_sel:[0,1] op_sel_hi:[1,1]")
        o.append("  s_nop 1")
        o.append(f"  v_mfma_f32_32x32x16_bf16 {vr(V_O+16*e,16)}, {vr(q,4)}, {pop if pop else vr(V_P+4*u,4)}, {vr(V_O+16*e,16)}")
        return o

    def spread(pieces, first, last):
        ns = last - first + 1
        place = {}
        n = len(pieces)
        for i, p in enumerate(pieces):
            sl = first + (i * ns) // n if n > ns else first + i
            place.setdefault(sl, []).extend(p)
        return place

    def phaseB(w, hook=None):
        rd, mf = qk_chunks()
        c1, c2 = softmax_chunks()
        n0 = w - 1
        mfg = [rd + sum(mf[0:2], [])] + [sum(mf[i:i+3], []) for i in range(2, 14, 3)] + [sum(mf[14:16], [])]
        pieces = mfg + [c1] + c2
        place = spread(pieces, n0, 15)
        for n in range(16):
            if hook and n == cslot:
                hook()
            L.extend(vload(n, w))
            if n in place:
                L.extend(place[n])

    def phaseA(w):
        s0 = max(0, w - 9)
        s1 = max(w - 1, min(s0 + 8, 12))
        p0 = [pv_piece(0, e) for e in range(8)]
        p1 = [pv_piece(1, e) for e in range(8)]
        place = spread(p0, s0, s1 - 1)
        for k, v in spread(p1, s1, 15).items():
            place.setdefault(k, []).extend(v)
        for n in range(16):
            L.extend(kload(n, w))
            if n in place:
                L.extend(place[n])

    def claim_code(tag):
        A(f"L_claim{tag}:")
        A(f"  s_mov_b32 s{S_T1}, 0x400000")
        A(f"L_claimw{tag}:")
        A(f"  v_readfirstlane_b32 s{S_T0}, v{V_FLG}")
        A("  s_nop 3")
        A(f"  s_bitcmp1_b32 s{S_T0}, 16")
        A(f"  s_cbranch_scc1 L_flag_ok{tag}")
        A(f"  s_sub_u32 s{S_T1}, s{S_T1}, 1")
        A(f"  s_cmp_eq_u32 s{S_T1}, 0")
        A(f"  s_cbranch_scc1 L_flag_ok{tag}")
        A("  s_sleep 8")
        A(f"  buffer_load_dword v{V_FLG}, v{V_Z}, s[{S_DSRD}:{S_DSRD+3}], 0 offen sc1")
        A("  s_waitcnt vmcnt(0)")
        A(f"  s_branch L_claimw{tag}")
        A(f"L_flag_ok{tag}:")
        if NI:
            do_claim()

    def do_claim():
        A(f"  v_mov_b32 v{V_CLM}, 1")
        A("  s_mov_b64 exec, 1")
        A(f"  buffer_atomic_add v{V_CLM}, v{V_Z}, s[{S_CSRD}:{S_CSRD+3}], 0 offen sc0")
        A("  s_mov_b64 exec, -1")

    A("L_s_sinit:")
    def set_blocks(i):
        for j in range(4):
            A(f"  s_add_u32 s{S_BO+j}, s{S_CUR}, {i*65536+j*16384}")
    def init_step1():
        A(f"  s_cmp_eq_u32 s{S_ST}, 1")
        A("  s_cbranch_scc0 L_i1")
        A(f"  v_readfirstlane_b32 s{S_T0}, v{V_TK}")
        A(f"  s_mov_b32 s{S_ST}, 0")
        A("  s_nop 3")
        A(f"  s_and_b32 s{S_T0}, s{S_T0}, 0xff")
        A(f"  s_cmp_eq_u32 s{S_T0}, 0")
        A("  s_cbranch_scc0 L_i1")
        A(f"  v_mov_b32 v{V_TK}, 0")
        A(f"  v_lshlrev_b32 v{V_AD}, 2, v{V_LANE}")
        A("  s_mov_b64 exec, 0xff")
        A(f"  buffer_atomic_swap v{V_TK}, v{V_AD}, s[{S_CSRD}:{S_CSRD+3}], 0 offen sc0")
        A("  s_mov_b64 exec, -1")
        A(f"  s_mov_b32 s{S_ST}, 2")
        A("L_i1:")
    def init_step2():
        A(f"  s_cmp_eq_u32 s{S_ST}, 2")
        A("  s_cbranch_scc0 L_i2")
        A(f"  v_mov_b32 v{V_AD}, 0x10000")
        A("  s_mov_b64 exec, 1")
        A(f"  buffer_atomic_or v{V_AD}, v{V_Z}, s[{S_DSRD}:{S_DSRD+3}], 0 offen")
        A("  s_mov_b64 exec, -1")
        A("L_i2:")
    n0 = W - 1
    for i in range(N0):
        last = i == N0 - 1
        set_blocks(0 if last else i + 1)
        for r in range(16):
            A(f"  v_mov_b32 v{V_S+r}, 0")
        rd, mf = qk_chunks(i & 1)
        tp = []
        if i == 0:
            t1 = [f"  ds_read_b128 {ar(A_K+4*ks,4)}, v{V_A} offset:{ks*32}" for ks in range(16)]
            tm = []
            for ks in range(16):
                tm.append(f"  s_waitcnt lgkmcnt({15-ks})")
                tm.append(f"  v_mfma_f32_32x32x16_bf16 {vr(V_S,16)}, {ar(A_K+4*ks,4)}, {ar(A_Q+4*ks,4)}, {vr(V_S,16)}")
            t3 = []
            for e in range(8):
                q = V_VT + 4 * (e & 3)
                sel = S_PL if (e & 1) == 0 else S_PH
                t3.append(f"  v_perm_b32 v{q}, v{V_V+(e>>1)}, v{V_V+(e>>1)}, s{sel}")
                t3.append("  s_nop 1")
                t3.append(f"  v_mfma_f32_32x32x16_bf16 {vr(V_O+16*e,16)}, {vr(q,4)}, {vr(V_P,4)}, 0")
            t4 = [f"  s_mov_b32 s{S_T0}, {f32(MASK_K)}", f"  v_mov_b32 v{V_X0}, {f32(-MASK_K)}",
                  f"  v_lshlrev_b32 v63, 16, v63", f"  v_fma_f32 v63, v63, s{S_T0}, v{V_X0}",
                  f"  v_add_f32 v63, v63, v{V_S}", f"  v_mul_f32 v{V_MC}, s{S_C}, v63"]
            t4 += [f"  v_mov_b32 v{V_S+r}, 0" for r in range(16)]
            tp = [t1 + tm[:16], tm[16:], t3, t4]
        c1, c2 = softmax_chunks()
        c1 = c1 + [f"  v_mov_b32 v{V_VT+i}, v{V_AL}"]
        c2 = [c + [f"  v_accvgpr_write_b32 a{A_P+8*i+4*hf+k}, v{V_P+4*hf+k}" for k in range(4)] for hf, c in enumerate(c2)]
        mfg = [rd + sum(mf[0:2], [])] + [sum(mf[k:k+3], []) for k in range(2, 14, 3)] + [sum(mf[14:16], [])]
        pieces = mfg + [c1] + c2
        nv = WV - 1
        if last:
            place = spread(pieces, nv, 8 + nv - 1)
            mv = [f"  v_mov_b32 v{V_S+k}, v{V_VT+k}" for k in range(N0)]
            p0 = [pv_piece(0, e, ar(A_P, 4), V_S) for e in range(8)]
            p0[0] = mv + p0[0]
            if N0 > 1:
                for k, v in spread(p0, 8 + nv, 15).items():
                    place.setdefault(k, []).extend(v)
        else:
            place = spread(pieces, n0, 15)
        if tp:
            L.extend(tp[0] + tp[1] + tp[2] + tp[3] + ["  s_nop 1"])
        for n in range(16):
            L.extend(vload(n, WV) if last else kload(n, W, (i + 1) & 1))
            if n in place:
                L.extend(place[n])
        if i == 1: init_step1()
        if i == 3: init_step2()
    def s_hook_poll():
        A(f"  buffer_load_dword v{V_FLG}, v{V_Z}, s[{S_DSRD}:{S_DSRD+3}], 0 offen sc1")
    for i in range(1, N0):
        last = i == N0 - 1
        wv = WL if i >= N0 - nl else WV
        nv = wv - 1
        set_blocks(i)
        place = spread([pv_piece(1, e, ar(A_P + 8 * (i - 1) + 4, 4)) for e in range(8)], nv, 7)
        if not last:
            for k, v in spread([pv_piece(0, e, ar(A_P + 8 * i, 4), V_S + i) for e in range(8)], 8 + nv, 15).items():
                place.setdefault(k, []).extend(v)
        else:
            hand = [f"  v_accvgpr_read_b32 v{V_P+k}, a{A_P+8*i+k}" for k in range(8)]
            hand += [f"  v_mov_b32 v{V_AL}, v{V_S+i}", f"  v_mov_b32 v{V_AL+1}, v{V_S+i}"]
            place.setdefault(12, []).extend(hand)
        for n in range(16):
            if n == cslot and i == N0 - 2:
                s_hook_poll()
            if n == cslot and last:
                claim_code("_s")
            L.extend(vload(n, (16 if (last and n >= 8 and nl) else wv)))
            if n in place:
                L.extend(place[n])

    dyn_start = len(L)
    A("L_d_loop:")
    A(f"  s_cmp_eq_u32 s{S_PRIV}, 3")
    A("  s_cbranch_scc1 L_loop_end")
    A(f"  s_waitcnt vmcnt({16-cslot})")
    A(f"  v_readfirstlane_b32 s{S_P}, v{V_CLM}")
    A("  s_nop 3")
    A(f"  s_cmp_lt_u32 s{S_P}, {NI}")
    A("  s_cbranch_scc1 L_d_item")
    A(f"  s_cmp_eq_u32 s{S_PRIV}, 1")
    A("  s_cbranch_scc0 L_loop_end")
    A(f"  s_mov_b32 s{S_PRIV}, 3")
    A(f"  s_mul_i32 s{S_T0}, s{S_W}, {npriv}")
    A(f"  s_add_u32 s{S_T0}, s{S_T0}, {PB}")
    A(f"  s_mov_b32 s{S_T4}, {npriv}")
    A("  s_branch L_item_ok")
    A("L_d_item:")
    A("L_dyn_cache:")
    A(f"  s_mov_b32 s{S_T3}, s{S_P}")
    A(f"  s_lshl_b32 s{S_T0}, s{S_T3}, 2")
    A(f"  s_mov_b32 s{S_T4}, 4")
    if n2:
        A(f"  s_cmp_lt_u32 s{S_T3}, {n4}")
        A("  s_cbranch_scc1 L_item_ok")
        A(f"  s_lshl_b32 s{S_T0}, s{S_T3}, 1")
        A(f"  s_add_u32 s{S_T0}, s{S_T0}, {2*n4}")
        A(f"  s_mov_b32 s{S_T4}, 2")
    A("L_item_ok:")
    for j in range(4):
        A(f"  s_add_u32 s{S_T1}, s{S_T0}, {j}")
        A(f"  s_lshr_b32 s{S_T2}, s{S_T1}, 6"); A(f"  s_add_u32 s{S_T2}, s{S_T2}, {N0}"); A(f"  s_lshl_b32 s{S_T2}, s{S_T2}, 16")
        A(f"  s_bfe_u32 s{S_T3}, s{S_T1}, 0x20004"); A(f"  s_lshl_b32 s{S_T3}, s{S_T3}, 20"); A(f"  s_add_u32 s{S_T2}, s{S_T2}, s{S_T3}")
        A(f"  s_and_b32 s{S_T3}, s{S_T1}, 3"); A(f"  s_lshl_b32 s{S_T3}, s{S_T3}, 14"); A(f"  s_add_u32 s{S_T2}, s{S_T2}, s{S_T3}")
        A(f"  s_bfe_u32 s{S_T3}, s{S_T1}, 0x20002"); A(f"  s_lshl_b32 s{S_T3}, s{S_T3}, 12"); A(f"  s_add_u32 s{S_T2}, s{S_T2}, s{S_T3}")
        A(f"  s_cmp_gt_u32 s{S_T4}, {j}")
        A(f"  s_cselect_b32 s{S_BO+j}, s{S_T2}, 0x400000")
        A(f"  s_cselect_b32 s{S_BI+j}, 0, 0xff800000")
    A("L_tile_ready:")
    phaseA(W2)
    A("L_d_sinit:")
    for r in range(16):
        A(f"  v_mov_b32 v{V_S+r}, s{S_BI + (r>>2)}")
    A("L_d_phaseB:")
    def d_hook():
        A(f"  s_cmp_eq_u32 s{S_PRIV}, 3")
        A("  s_cbranch_scc1 L_d_noclaim")
        do_claim()
        A("L_d_noclaim:")
    phaseB(W2, d_hook)
    A(f"  s_mov_b32 s{S_VSRD}, s{S_VB}")
    A(f"  s_mov_b32 s{S_VSRD+1}, s{S_VB+1}")
    A(f"  s_mov_b32 s{S_VSRD+2}, 0x400000")
    A("  s_branch L_d_loop")

    if NI == 0:
        del L[dyn_start:]
    if drop:
        i0 = L.index("L_s_sinit:"); i1 = len(L)
        def keep(x):
            if "mfma" in drop and "v_mfma" in x: return False
            if "ds" in drop and ("ds_read" in x or ("lgkmcnt" in x and "lgkmcnt(0)" not in x)): return False
            if "valu" in drop and any(k in x for k in ("v_perm", "v_pk_mul", "v_exp", "v_fma", "v_add_f32", "v_cvt_pk", "v_max")): return False
            return True
        L[i0:i1] = [x for x in L[i0:i1] if keep(x)]
    A("L_loop_end:")
    A(f"  v_mov_b32 v{V_A}, v{V_L}")
    A(f"  v_mov_b32 v{V_B}, v{V_L}")
    A("  s_nop 1")
    A(f"  v_permlane32_swap_b32 v{V_A}, v{V_B}")
    A("  s_nop 1")
    A(f"  v_add_f32 v{V_L}, v{V_A}, v{V_B}")
    A(f"  v_and_b32 v{V_X0}, 31, v{V_LANE}")
    A(f"  v_lshlrev_b32 v{V_X0}, 3, v{V_X0}")
    A(f"  s_lshl_b32 s{S_T0}, s{S_W}, 8")
    A(f"  s_add_u32 s{S_T0}, s{S_T0}, {LDS_STAT}")
    A(f"  v_add_u32 v{V_X1}, s{S_T0}, v{V_X0}")
    A(f"  ds_write_b64 v{V_X1}, {vr(V_MC,2)}")
    A(f"  v_add_u32 v{V_T0}, s{S_LDSB}, v{V_VSRC}")
    A(f"  s_mov_b32 s{S_TSRD}, s32")
    A(f"  s_and_b32 s{S_TSRD+1}, s33, 0xffff")
    A(f"  s_mov_b32 s{S_TSRD+2}, 0x1000000")
    A(f"  s_mov_b32 s{S_RDY}, 0")
    if pub16:
        A(f"  s_lshl_b32 s{S_BO}, s{S_G}, 17")
        A(f"  s_lshl_b32 s{S_T2}, s{S_W}, 13")
        A(f"  s_add_u32 s{S_BO}, s{S_BO}, s{S_T2}")
        A(f"  s_add_u32 s{S_BO+1}, s{S_BO}, 4096")
    else:
        A(f"  s_lshl_b32 s{S_BO}, s{S_G}, 17")
        A(f"  s_lshl_b32 s{S_T2}, s{S_W}, 13")
        A(f"  s_add_u32 s{S_BO}, s{S_BO}, s{S_T2}")
        A(f"  s_lshl_b32 s{S_BO+1}, s{S_G}, 12")
        A(f"  s_lshl_b32 s{S_T2}, s{S_W}, 8")
        A(f"  s_add_u32 s{S_BO+1}, s{S_BO+1}, s{S_T2}")
        A(f"  s_add_u32 s{S_BO+1}, s{S_BO+1}, {WS_STAT}")
    A("  s_waitcnt vmcnt(8)")
    for e in range(8):
        L.extend(pv_piece(0, e))
    A(f"  s_cmp_eq_u32 s{S_S}, 0")
    A("  s_cbranch_scc0 L_nopoll0")
    A(f"  buffer_load_dword v{V_FLG}, v{V_PCO}, s[{S_CSRD}:{S_CSRD+3}], 0 offen sc1")
    A("  s_waitcnt vmcnt(1)")
    A("  s_branch L_lastpv")
    A("L_nopoll0:")
    A("  s_waitcnt vmcnt(0)")
    A("L_lastpv:")
    if stamps:
        A(f"  s_memrealtime s[{S_ST0+2}:{S_ST0+3}]")
        if noepi:
            A(f"  s_memrealtime s[{S_ST0+4}:{S_ST0+5}]")
            A("  s_branch L_fin")
        A("  s_waitcnt lgkmcnt(0)")
    for w in range(1, 4):
        A(f"  s_cmp_eq_u32 s{S_W}, {w}")
        A(f"  s_cbranch_scc1 L_wr{w}")
    for w in range(4):
        if w:
            A(f"L_wr{w}:")
        def wr(e):
            for wp in range(4):
                if wp != w:
                    A(f"  ds_write_b128 v{V_T0}, {vr(V_O+16*e+4*wp,4)} offset:{wp*8192+e*1024}")
        for e in range(8):
            L.extend(pv_piece(1, e))
            if e >= 2:
                wr(e - 2)
        A("  s_nop 7")
        wr(6)
        A("  s_nop 3")
        wr(7)
        if w < 3:
            A("  s_branch L_wr_done")
    A("L_wr_done:")

    PD = {1: 64, 2: 96, 3: 24}
    PH = {1: 64, 2: 80, 3: 96}
    PS = {1: 112, 2: 116, 3: 120}
    ctr = [0]
    def check_and_load(repoll):
        t = ctr[0]; ctr[0] += 1
        A(f"  v_readfirstlane_b32 s{S_T0}, v{V_FLG}")
        A("  s_nop 3")
        A(f"  s_andn2_b32 s{S_T0}, s{S_T0}, s{S_RDY}")
        A(f"  s_or_b32 s{S_RDY}, s{S_RDY}, s{S_T0}")
        for k in range(1, 4):
            A(f"  s_bitcmp1_b32 s{S_T0}, {k}")
            A(f"  s_cbranch_scc0 L_cl{t}_{k}")
            if pub16:
                A(f"  s_add_u32 s{S_T1}, s{S_BO}, {k*32768}")
                A(f"  s_add_u32 s{S_T2}, s{S_BO+1}, {k*32768}")
                A(f"  buffer_load_dwordx4 {vr(PS[k],4)}, v{V_VSRC}, s[{S_TSRD}:{S_TSRD+3}], s{S_T2} offen sc1")
                for i in range(4):
                    A(f"  buffer_load_dwordx4 {vr(PH[k]+4*i,4)}, v{V_VSRC}, s[{S_TSRD}:{S_TSRD+3}], s{S_T1} offen offset:{i*1024} sc1")
            else:
                A(f"  s_add_u32 s{S_T1}, s{S_BO+1}, {k*1024}")
                A(f"  buffer_load_dwordx2 {vr(V_S+2*k,2)}, v{V_X0}, s[{S_TSRD}:{S_TSRD+3}], s{S_T1} offen sc1")
                A(f"  s_add_u32 s{S_T1}, s{S_BO}, {k*32768}")
                A(f"  s_add_u32 s{S_T2}, s{S_BO}, {k*32768+4096}")
                for e in range(8):
                    so = S_T1 if e < 4 else S_T2
                    A(f"  buffer_load_dwordx4 {vr(PD[k]+4*e,4)}, v{V_VSRC}, s[{S_TSRD}:{S_TSRD+3}], s{so} offen offset:{(e&3)*1024} sc1")
            A(f"L_cl{t}_{k}:")
        if repoll:
            A(f"  s_and_b32 s{S_T0}, s{S_RDY}, 14")
            A(f"  s_cmp_eq_u32 s{S_T0}, 14")
            A(f"  s_cbranch_scc1 L_cl{t}_all")
            A(f"  buffer_load_dword v{V_FLG}, v{V_PCO}, s[{S_CSRD}:{S_CSRD+3}], 0 offen sc1")
            A(f"L_cl{t}_all:")

    A(f"  s_cmp_eq_u32 s{S_S}, 0")
    A("  s_cbranch_scc0 L_nopre")
    A("  s_waitcnt vmcnt(0)")
    check_and_load(True)
    A("L_nopre:")
    A("  s_waitcnt lgkmcnt(0)")
    A("  s_barrier")
    ST = [8, 10, 14, 56]
    A(f"  v_add_u32 v{V_X1}, {LDS_STAT}, v{V_X0}")
    for w in range(4):
        A(f"  ds_read_b64 {vr(ST[w],2)}, v{V_X1} offset:{w*256}")
    A(f"  s_lshl_b32 s{S_T0}, s{S_W}, 13")
    A(f"  v_add_u32 v{V_T0}, s{S_T0}, v{V_VSRC}")
    A(f"  v_add_u32 v{V_T1}, 0x10000, v{V_T0}")
    for w in range(4):
        A(f"  s_cmp_eq_u32 s{S_W}, {w}")
        A(f"  s_cbranch_scc1 L_rd{w}")
        for e in range(8):
            base = V_T0 if w < 2 else V_T1
            A(f"  ds_read_b128 {vr(V_O+16*e+4*w,4)}, v{base} offset:{(w&1)*32768+e*1024}")
        A(f"L_rd{w}:")
    A("  s_waitcnt lgkmcnt(15)")
    A(f"  v_max3_f32 v{V_MC}, v{ST[0]}, v{ST[1]}, v{ST[2]}")
    A(f"  v_max_f32 v{V_MC}, v{V_MC}, v{ST[3]}")
    for w in range(4):
        A(f"  v_sub_f32 v{ST[w]}, v{ST[w]}, v{V_MC}")
    for w in range(4):
        A(f"  v_exp_f32 v{ST[w]}, v{ST[w]}")
    A("  s_nop 0")
    A(f"  v_mul_f32 v{V_L}, v{ST[0]}, v{ST[0]+1}")
    for w in range(1, 4):
        A(f"  v_fma_f32 v{V_L}, v{ST[w]}, v{ST[w]+1}, v{V_L}")
    A(f"  s_lshl_b32 s{S_T0}, s{S_S}, 15")
    A(f"  s_add_u32 s{S_T1}, s{S_BO}, s{S_T0}")
    A(f"  s_add_u32 s{S_T2}, s{S_T1}, 4096")
    A(f"  s_cmp_eq_u32 s{S_S}, 0")
    A("  s_cbranch_scc1 L_comb_fma")
    def fma_e(e):
        o = V_O + 16 * e
        for h2 in range(2):
            A(f"  v_pk_mul_f32 {vr(o+2*h2,2)}, {vr(o+2*h2,2)}, {vr(ST[0],2)} op_sel_hi:[1,0]")
        for w in range(1, 4):
            for h2 in range(2):
                A(f"  v_pk_fma_f32 {vr(o+2*h2,2)}, {vr(o+4*w+2*h2,2)}, {vr(ST[w],2)}, {vr(o+2*h2,2)} op_sel_hi:[1,0,1]")
    if pub16:
        for e in range(8):
            A(f"  s_waitcnt lgkmcnt({7-e})")
            fma_e(e)
            o = V_O + 16 * e
            if e == 0:
                A(f"  v_max3_f32 v{V_X1}, |v{o}|, |v{o+1}|, |v{o+2}|")
                A(f"  v_max_f32 v{V_X1}, v{V_X1}, |v{o+3}|")
            else:
                A(f"  v_max3_f32 v{V_X1}, v{V_X1}, |v{o}|, |v{o+1}|")
                A(f"  v_max3_f32 v{V_X1}, v{V_X1}, |v{o+2}|, |v{o+3}|")
        A(f"  v_frexp_exp_i32_f32 v{V_X1}, v{V_X1}")
        A(f"  v_max_i32 v{V_X1}, -100, v{V_X1}")
        A(f"  v_min_i32 v{V_X1}, 64, v{V_X1}") if False else None
        A(f"  v_sub_u32 v{V_T1}, 14, v{V_X1}")
        A(f"  v_ldexp_f32 v{V_AL}, 1.0, v{V_T1}")
        A(f"  v_subrev_u32 v{V_T1}, 14, v{V_X1}")
        A(f"  v_ldexp_f32 v8, 1.0, v{V_T1}")
        for e in range(8):
            o = V_O + 16 * e
            for h2 in range(2):
                A(f"  v_pk_mul_f32 {vr(o+2*h2,2)}, {vr(o+2*h2,2)}, {vr(V_AL,2)} op_sel_hi:[1,0]")
            for h2 in range(2):
                A(f"  v_cvt_pk_f16_f32 v{64+2*e+h2}, v{o+2*h2}, v{o+2*h2+1}")
            if e & 1:
                A(f"  buffer_store_dwordx4 {vr(64+4*(e>>1),4)}, v{V_VSRC}, s[{S_TSRD}:{S_TSRD+3}], s{S_T1} offen offset:{(e>>1)*1024} {pubflags}")
        A(f"  buffer_store_dwordx4 {vr(V_MC,4)}, v{V_VSRC}, s[{S_TSRD}:{S_TSRD+3}], s{S_T2} offen {pubflags}")
    else:
        for e in range(8):
            A(f"  s_waitcnt lgkmcnt({7-e})")
            fma_e(e)
            so = S_T1 if e < 4 else S_T2
            A(f"  buffer_store_dwordx4 {vr(V_O+16*e,4)}, v{V_VSRC}, s[{S_TSRD}:{S_TSRD+3}], s{so} offen offset:{(e&3)*1024} {pubflags}")
        A(f"  s_lshl_b32 s{S_T0}, s{S_S}, 10")
        A(f"  s_add_u32 s{S_T1}, s{S_BO+1}, s{S_T0}")
        A(f"  buffer_store_dwordx2 {vr(V_MC,2)}, v{V_X0}, s[{S_TSRD}:{S_TSRD+3}], s{S_T1} offen {pubflags}")
    A(f"  s_lshl_b32 s{S_T0}, 1, s{S_S}")
    A(f"  v_mov_b32 v{V_AD}, s{S_T0}")
    A("  s_waitcnt vmcnt(0)")
    if stamps:
        A(f"  s_memrealtime s[{S_ST0+4}:{S_ST0+5}]")
    A("  s_mov_b64 exec, 1")
    A(f"  buffer_atomic_or v{V_AD}, v{V_PCO}, s[{S_CSRD}:{S_CSRD+3}], 0 offen")
    A("  s_mov_b64 exec, -1")
    A("  s_branch L_fin")
    A("L_comb_fma:")
    for e in range(8):
        A(f"  s_waitcnt lgkmcnt({7-e})")
        fma_e(e)
    if stamps:
        A(f"  s_memrealtime s[{S_ST0+4}:{S_ST0+5}]")
    S = V_S
    A(f"  s_lshl_b32 s{S_T0}, s{S_G}, 14")
    A(f"  s_add_u32 s{S_KSRD}, s28, s{S_T0}")
    A(f"  s_addc_u32 s{S_KSRD+1}, s29, 0")
    A(f"  s_and_b32 s{S_KSRD+1}, s{S_KSRD+1}, 0xffff")
    A(f"  s_mov_b32 s{S_KSRD+2}, 16384")
    A(f"  v_lshrrev_b32 v{V_T0}, 5, v{V_LANE}")
    A(f"  v_lshlrev_b32 v{V_T0}, 6, v{V_T0}")
    A(f"  v_lshl_add_u32 v{V_T0}, v{V_X0}, 6, v{V_T0}")
    A(f"  v_mov_b32 v{S}, v{V_MC}")
    A(f"  v_mov_b32 v{S+1}, v{V_L}")
    A(f"  s_mov_b32 s{S_CNT}, 0x400000")
    A("L_poll:")
    A(f"  s_and_b32 s{S_T0}, s{S_RDY}, 14")
    A(f"  s_cmp_eq_u32 s{S_T0}, 14")
    A("  s_cbranch_scc1 L_loaded")
    A(f"  s_sub_u32 s{S_CNT}, s{S_CNT}, 1")
    A(f"  s_cmp_eq_u32 s{S_CNT}, 0")
    A("  s_cbranch_scc1 L_loaded")
    A("  s_waitcnt vmcnt(0)")
    check_and_load(True)
    A("  s_branch L_poll")
    A("L_loaded:")
    A(f"  s_lshl_b32 s{S_T1}, s{S_W}, 7")
    A("  s_waitcnt vmcnt(0)")
    if pub16:
        for k in range(1, 4):
            A(f"  v_mov_b32 v{S+2*k}, v{PS[k]}")
            A(f"  v_mov_b32 v{S+2*k+1}, v{PS[k]+1}")
    A(f"  v_max3_f32 v{V_MC}, v{S}, v{S+2}, v{S+4}")
    A(f"  v_max_f32 v{V_MC}, v{V_MC}, v{S+6}")
    for w in range(4):
        A(f"  v_sub_f32 v{S+2*w}, v{S+2*w}, v{V_MC}")
    for w in range(4):
        A(f"  v_exp_f32 v{S+2*w}, v{S+2*w}")
    A("  s_nop 0")
    A(f"  v_mul_f32 v{V_L}, v{S}, v{S+1}")
    for w in range(1, 4):
        A(f"  v_fma_f32 v{V_L}, v{S+2*w}, v{S+2*w+1}, v{V_L}")
    A(f"  v_rcp_f32 v{V_L}, v{V_L}")
    A("  s_nop 0")
    for w in range(4):
        A(f"  v_mul_f32 v{S+2*w}, v{S+2*w}, v{V_L}")
    if pub16:
        for k in range(1, 4):
            A(f"  v_mul_f32 v{S+2*k}, v{S+2*k}, v{PS[k]+2}")
    for e in range(8):
        o = V_O + 16 * e
        for h2 in range(2):
            A(f"  v_pk_mul_f32 {vr(o+2*h2,2)}, {vr(o+2*h2,2)}, {vr(S,2)} op_sel_hi:[1,0]")
        for k in range(1, 4):
            if pub16:
                for j in range(4):
                    A(f"  v_fma_mix_f32 v{o+j}, v{PH[k]+2*e+(j>>1)}, v{S+2*k}, v{o+j} op_sel:[{j&1},0,0] op_sel_hi:[1,0,0]")
            else:
                for h2 in range(2):
                    A(f"  v_pk_fma_f32 {vr(o+2*h2,2)}, {vr(PD[k]+4*e+2*h2,2)}, {vr(S+2*k,2)}, {vr(o+2*h2,2)} op_sel_hi:[1,0,1]")
    OUTR = 32
    for j in range(4):
        for i in range(4):
            A(f"  v_cvt_pk_bf16_f32 v{OUTR+4*j+i}, v{V_O+16*(2*i)+j}, v{V_O+16*(2*i+1)+j}")
        A(f"  buffer_store_dwordx4 {vr(OUTR+4*j,4)}, v{V_T0}, s[{S_KSRD}:{S_KSRD+3}], s{S_T1} offen offset:{j*16} {outflags}")
    if dbgtime:
        A("  s_waitcnt vmcnt(0)")
        A(f"  s_memrealtime s[{S_ST0+6}:{S_ST0+7}]")
        A("  s_waitcnt lgkmcnt(0)")
        A(f"  s_sub_u32 s{S_T0}, s{S_ST0+6}, s{S_ST0}")
        A(f"  s_lshl_b32 s{S_T0}, s{S_T0}, 17")
        A(f"  s_cmp_eq_u32 s{S_W}, 0")
        A("  s_cbranch_scc0 L_fin")
        A(f"  v_mov_b32 v{V_AD}, s{S_T0}")
        A("  s_mov_b64 exec, 1")
        A(f"  buffer_atomic_or v{V_AD}, v{V_Z}, s[{S_DSRD}:{S_DSRD+3}], 0 offen")
        A("  s_mov_b64 exec, -1")
    A("L_fin:")
    if stamps:
        A("  s_waitcnt vmcnt(0)")
        A(f"  s_memrealtime s[{S_ST0+6}:{S_ST0+7}]")
        A("  s_waitcnt lgkmcnt(0)")
        A(f"  s_lshl_b32 s{S_T0}, s{S_G}, 2")
        A(f"  s_add_u32 s{S_T0}, s{S_T0}, s{S_S}")
        A(f"  s_lshl_b32 s{S_T0}, s{S_T0}, 2")
        A(f"  s_add_u32 s{S_T0}, s{S_T0}, s{S_W}")
        A(f"  s_lshl_b32 s{S_T0}, s{S_T0}, 5")
        A(f"  s_add_u32 s{S_T0}, s{S_T0}, 0x30000000")
        A(f"  s_cmp_eq_u32 s{S_S}, 0")
        A(f"  s_cselect_b32 s{S_T4}, 0x40000000, 0")
        A(f"  s_or_b32 s{S_ST0+7}, s{S_ST0+7}, s{S_T4}")
        if st_start:
            for i in range(4):
                A(f"  s_mov_b32 s{S_ST0+2+i}, s{88+i}")
        for i in range(8):
            A(f"  v_mov_b32 v{V_S+i}, s{S_ST0+i}")
        A(f"  v_mov_b32 v{V_X0}, s{S_T0}")
        A(f"  v_cmp_eq_u32 vcc, 0, v{V_LANE}")
        A(f"  s_and_saveexec_b64 s[{S_EX}:{S_EX+1}], vcc")
        A(f"  global_store_dwordx4 v{V_X0}, {vr(V_S,4)}, s[32:33]")
        A(f"  global_store_dwordx4 v{V_X0}, {vr(V_S+4,4)}, s[32:33] offset:16")
    A("L_done:")
    A("  s_endpgm")
    A('.section .rodata,"a"')
    A(".p2align 6")
    A(f".amdhsa_kernel {KN}")
    A("  .amdhsa_next_free_vgpr 512")
    A("  .amdhsa_next_free_sgpr 96")
    A("  .amdhsa_accum_offset 256")
    A("  .amdhsa_group_segment_fixed_size 0")
    A("  .amdhsa_kernarg_size 72")
    A("  .amdhsa_user_sgpr_count 2")
    A("  .amdhsa_user_sgpr_kernarg_segment_ptr 1")
    A("  .amdhsa_system_sgpr_workgroup_id_x 1")
    A(".end_amdhsa_kernel")
    return "\n".join(L) + "\n"

def emit(variants, g=gen):
    import subprocess, json
    names = []
    for n, kw in variants.items():
        p = f"bench/{n}.s"
        open(p, "w").write(g(**kw))
        r = subprocess.run(["clang", "-x", "assembler", "-target", "amdgcn-amd-amdhsa", "-mcpu=gfx950", "-c", p, "-o", "x.o"], capture_output=True, text=True)
        if r.returncode:
            print("FAIL", n, r.stderr[:1500])
        names.append(f"bench/{n}.s")
    print(" ".join(names))
    print(json.dumps(["bench/run_bench.py", "cdna_kernels/cdna_launch.py", "cdna_kernels/cdna_unwritten_srd_check.py"] + names))

if __name__ == "__main__":
    B = dict(W=5, W2=12, N0=16, stamps=True, wgmap="rot", cslot=6, npriv=0)
    variants = {
        "k12_N16": dict(B),
        "k12_N16_l1": dict(B, nl=1),
        "k12_N16_l2": dict(B, nl=2),
        "k12_N16_l3": dict(B, nl=3),
        "k12_N16_l5": dict(B, nl=5),
        "k12_N16_l3_7": dict(B, nl=3, WL=7),
        "k12_N15": dict(B, N0=15),
        "k12_N15_l2": dict(B, N0=15, nl=2),
    }
    emit(variants)
```
